```python
import torch

def _softmax(x, axis=-1):
    return torch.softmax(x, dim=axis)

def _gelu(x):
    return torch.nn.functional.gelu(x, approximate='tanh')

def _silu(x):
    return torch.nn.functional.silu(x)

def _sigmoid(x):
    return torch.sigmoid(x)

def _layernorm(x, axis=-1, eps=1e-05):
    m = x.mean(dim=axis, keepdim=True)
    v = x.var(dim=axis, keepdim=True, unbiased=False)
    return (x - m) / torch.sqrt(v + eps)

def _scatter_add(tgt, idx, src, axis=0):
    return tgt.clone().index_add_(axis, idx, src)

def _segment_sum(src, seg, n):
    out = torch.zeros((n,) + src.shape[1:], dtype=src.dtype)
    return out.index_add_(0, seg, src)

def _pad(x, pw):
    flat = tuple((v for pair in reversed(pw) for v in pair))
    return torch.nn.functional.pad(x, flat)
kernel_name = 'adaLN_cond__memory_aug_recurrent_mem_tr__dense_activation_relu__prompt'

def setup_inputs():

    _w = lambda a: (lambda t: t.to(torch.bfloat16) if t.is_floating_point() else t)(torch.as_tensor(a))

    def _A_setup():
        B, S, Dm = (1, 2048, 512)
        H, Dh = (32, 128)
        M, seg = (8, 32)
        seg = min(seg, S)
        S = S // seg * seg
        return {'x': _w((lambda *s: torch.randn(*s, dtype=torch.bfloat16) * 0.05)(B, S, Dm)), 'mem0': _w((lambda *s: torch.randn(*s, dtype=torch.bfloat16) * 0.4)(B, M, Dm)), 'Wq': _w((lambda *s: torch.randn(*s, dtype=torch.bfloat16) * 3.2)(Dm, H, Dh) * Dm ** (-0.5)), 'Wk': _w((lambda *s: torch.randn(*s, dtype=torch.bfloat16) * 3.2)(Dm, H, Dh) * Dm ** (-0.5)), 'Wv': _w((lambda *s: torch.randn(*s, dtype=torch.bfloat16) * 0.4)(Dm, H, Dh) * Dm ** (-0.5)), 'Wo': _w((lambda *s: torch.randn(*s, dtype=torch.bfloat16) * 0.4)(H, Dh, Dm) * (H * Dh) ** (-0.5)), 'seg_len': seg}
    _A_in = _A_setup()

    def _B_setup():
        B, S, D, Dff = (1, 2048, 512, 1376)
        return {'x': _w((lambda *s: torch.randn(*s, dtype=torch.bfloat16) * 0.05)(B, S, D)), 'w1': _w((lambda *s: torch.randn(*s, dtype=torch.bfloat16) * 0.05)(D, Dff)), 'w2': _w((lambda *s: torch.randn(*s, dtype=torch.bfloat16) * 0.05)(Dff, D))}
    _B_in = _B_setup()
    return {'A_x': _A_in['x'], 'A_mem0': _A_in['mem0'], 'A_Wq': _A_in['Wq'], 'A_Wk': _A_in['Wk'], 'A_Wv': _A_in['Wv'], 'A_Wo': _A_in['Wo'], 'A_seg_len': _A_in['seg_len'], 'B_x': _B_in['x'], 'B_w1': _B_in['w1'], 'B_w2': _B_in['w2'], 'c': _w((lambda *s: torch.randn(*s, dtype=torch.bfloat16) * 0.1)(1, 512) * 8.0), 'w_mod': _w((lambda *s: torch.randn(*s, dtype=torch.bfloat16) * 0.1)(512, 6 * 512) * 512 ** (-0.5) * 8.0)}

def reference(A_x, A_mem0, A_Wq, A_Wk, A_Wv, A_Wo, A_seg_len, B_x, B_w1, B_w2, c, w_mod):

    def _A_ref(x, mem0, Wq, Wk, Wv, Wo, seg_len):
        B, S, Dm = x.shape
        H, Dh = (Wq.shape[1], Wq.shape[2])
        M = mem0.shape[1]
        scale = Dh ** (-0.5)
        n_seg = S // seg_len
        L = M + seg_len
        idx = torch.arange(L)
        mask = (idx[:, None] < M) | (idx[:, None] >= idx[None, :])
        mem = mem0
        outs = []
        for s in range(n_seg):
            xs = x[:, s * seg_len:(s + 1) * seg_len, :].clone()
            h = torch.concatenate([mem, xs], axis=1)
            q = torch.einsum('btd,dhe->bhte', h, Wq)
            k = torch.einsum('btd,dhe->bhte', h, Wk)
            v = torch.einsum('btd,dhe->bhte', h, Wv)
            scores = torch.einsum('bhqe,bhke->bhqk', q, k) * scale
            scores = torch.where(mask[None, None], scores, -1000000000.0)
            p = _softmax(scores, axis=-1)
            o = torch.einsum('bhqk,bhke->bhqe', p, v)
            o = torch.einsum('bhte,hed->btd', o, Wo)
            mem = o[:, :M, :].clone()
            outs.append(o[:, M:, :])
        return torch.concatenate(outs, axis=1)

    def _B_ref(x, w1, w2):
        h = torch.einsum('bsd,df->bsf', x, w1)
        zero = torch.zeros_like(h)
        h = torch.maximum(h, zero)
        return torch.einsum('bsf,fd->bsd', h, w2)
    x = A_x
    mod = (_silu(c) @ w_mod).reshape(c.shape[0], 6, 1, -1)
    sa, ca, ga, sb, cb, gb = (mod[:, 0].clone(), mod[:, 1].clone(), mod[:, 2].clone(), mod[:, 3].clone(), mod[:, 4].clone(), mod[:, 5].clone())
    h = _layernorm(x, axis=-1) * (1 + ca) + sa
    x = x + ga * _A_ref(h, A_mem0, A_Wq, A_Wk, A_Wv, A_Wo, A_seg_len)
    h = _layernorm(x, axis=-1) * (1 + cb) + sb
    x = x + gb * _B_ref(h, B_w1, B_w2)
    return x
```

```python
import re

class R:
    __slots__=("k","n","c")
    def __init__(s,k,n,c=1): s.k=k; s.n=n; s.c=c
    def __getitem__(s,i):
        if isinstance(i,slice):
            a=i.start or 0; b=i.stop if i.stop is not None else s.c
            assert 0<=a<b<=s.c, (a,b,s.c)
            return R(s.k,s.n+a,b-a)
        assert 0<=i<s.c
        return R(s.k,s.n+i,1)
    def __str__(s):
        if s.k in ("vcc","exec","m0","scc"): return s.k
        if s.c==1: return f"{s.k}{s.n}"
        return f"{s.k}[{s.n}:{s.n+s.c-1}]"
    __repr__=__str__
    def regs(s):
        if s.k in ("vcc","exec","m0","scc"): return [(s.k,0)]
        return [(s.k,s.n+i) for i in range(s.c)]
def v(n,c=1): return R("v",n,c)
def a(n,c=1): return R("a",n,c)
def s(n,c=1): return R("s",n,c)
class Neg(R):
    def __init__(s,r): R.__init__(s,r.k,r.n,r.c)
    def __str__(s): return "-"+R.__str__(s)
    __repr__=__str__
VCC=R("vcc",0); EXEC=R("exec",0); M0=R("m0",0); SCC=R("scc",0)

SALU_SCC = ("s_add_u32","s_addc_u32","s_sub_u32","s_subb_u32","s_add_i32","s_sub_i32","s_lshl_b32","s_lshr_b32","s_ashr_i32",
            "s_and_b32","s_or_b32","s_xor_b32","s_and_b64","s_or_b64","s_xor_b64","s_andn2_b64","s_lshl_b64","s_lshr_b64","s_min_u32","s_max_u32",
            "s_not_b32","s_bfe_u32","s_addk_i32","s_andn2_b32","s_orn2_b64","s_and_saveexec_b64","s_or_saveexec_b64","s_bcnt1_i32_b64","s_abs_i32")
TRANS=("v_exp_f32","v_log_f32","v_rcp_f32","v_rsq_f32","v_sqrt_f32","v_sin_f32","v_cos_f32","v_rcp_iflag_f32")

class Ins:
    __slots__=("op","ops","mods","dst","src","kind","passes","tr","tw","cmt","prio","idx","lat_hint","vm","lg","raw","after")
    def __init__(s,op,ops=(),mods="",tr=(),tw=(),cmt="",raw=None):
        s.op=op; s.ops=list(ops); s.mods=mods; s.cmt=cmt; s.raw=raw
        s.tr=list(tr); s.tw=list(tw); s.prio=0; s.lat_hint=None; s.after=[]
        s.passes=0; s.dst=[]; s.src=[]; s.vm=False; s.lg=False
        s.classify()
    def text(s):
        if s.raw is not None: return s.raw
        t=s.op
        if s.ops: t+=" "+", ".join(str(o) for o in s.ops)
        if s.mods: t+=" "+s.mods
        if s.cmt: t+="   ; "+s.cmt
        return t
    def classify(s):
        op=s.op; ops=s.ops
        regs=lambda o: o.regs() if isinstance(o,R) else []
        allr=lambda l: [r for o in l for r in regs(o)]
        if s.raw is not None and op in ("label","raw"):
            s.kind=op; return
        if op=="s_waitcnt": s.kind="waitcnt"; return
        if op=="s_nop": s.kind="nop"; return
        if op=="s_barrier": s.kind="barrier"; return
        if op in ("s_sleep","s_setprio","s_endpgm"): s.kind="misc"; return
        if op.startswith("s_cbranch") or op=="s_branch":
            s.kind="branch"
            if "scc" in op: s.src=[("scc",0)]
            if "vcc" in op: s.src=[("vcc",0)]
            if "exec" in op: s.src=[("exec",0)]
            return
        if op.startswith("v_smfmac"):
            s.kind="smfmac"; s.passes = 8 if "32x32" in op else 4
            s.dst=regs(ops[0]); s.src=allr(ops); return
        if op.startswith("v_mfma"):
            s.kind="mfma"; s.passes = 8 if "32x32" in op else 4
            s.dst=regs(ops[0]); s.src=allr(ops[1:]); return
        if op.startswith("ds_read") or op.startswith("ds_bpermute") or op.startswith("ds_swizzle"):
            s.kind="ds_read"; s.lg=True; s.dst=regs(ops[0]); s.src=allr(ops[1:]); return
        if op.startswith("ds_write") or op.startswith("ds_add"):
            s.kind="ds_write"; s.lg=True; s.src=allr(ops); return
        if op.startswith("buffer_load") or op.startswith("global_load"):
            s.vm=True
            if " lds" in (" "+s.mods):
                s.kind="vmem_lds"; s.src=allr(ops)+[("m0",0)]
            else:
                s.kind="vmem_load"; s.dst=regs(ops[0]); s.src=allr(ops[1:])
            return
        if op.startswith("buffer_store") or op.startswith("global_store"):
            s.vm=True; s.kind="vmem_store"; s.src=allr(ops); return
        if op.startswith("buffer_atomic") or op.startswith("global_atomic"):
            s.vm=True; s.src=allr(ops)
            if "sc0" in s.mods: s.kind="vmem_load"; s.dst=regs(ops[0])
            else: s.kind="vmem_store"
            return
        if op in ("buffer_inv","buffer_wbl2"):
            s.vm=True; s.kind="vmem_store"; return
        if op.startswith("s_load") or op in ("s_memtime","s_memrealtime"):
            s.kind="smem"; s.lg=True; s.dst=regs(ops[0]); s.src=allr(ops[1:]); return
        if op.startswith("s_cmp") or op.startswith("s_bitcmp"):
            s.kind="salu"; s.dst=[("scc",0)]; s.src=allr(ops); return
        if op.startswith("s_"):
            s.kind="salu"; s.dst=regs(ops[0]); s.src=allr(ops[1:])
            if op in SALU_SCC: s.dst=s.dst+[("scc",0)]
            if op in ("s_addc_u32","s_subb_u32","s_cselect_b32","s_cselect_b64"): s.src=s.src+[("scc",0)]
            if op in ("s_addk_i32",): s.src=s.src+regs(ops[0])
            if op.endswith("saveexec_b64"): s.dst=s.dst+[("exec",0)]; s.src=s.src+[("exec",0)]
            return
        assert op.startswith("v_"), op
        s.kind="valu"
        if op in TRANS: s.kind="trans"
        if op.startswith("v_permlane"):
            s.kind="permlane"; s.dst=allr(ops); s.src=allr(ops); return
        if op.startswith("v_cmp"):
            s.dst=regs(ops[0]); s.src=allr(ops[1:]); return
        if op in ("v_add_co_u32","v_sub_co_u32","v_addc_co_u32","v_subb_co_u32"):
            s.dst=regs(ops[0])+regs(ops[1]); s.src=allr(ops[2:]); return
        s.dst=regs(ops[0]); s.src=allr(ops[1:])
        if op.startswith("v_fmac") or op.startswith("v_dot2c") or op.startswith("v_pk_fmac") or op.startswith("v_writelane"):
            s.src=s.src+regs(ops[0])
        if "_dpp" in op or "_sdwa" in op:
            s.kind="dpp"
            if "bound_ctrl" not in s.mods and "quad_perm" not in s.mods: s.src=s.src+regs(ops[0])
    def is_valu(s): return s.kind in ("valu","trans","dpp","permlane")
    def is_mfma(s): return s.kind in ("mfma","smfmac")

class Prog:
    def __init__(s): s.out=[]; s.cur=None
    def __call__(s,op,*ops,mods="",tr=(),tw=(),cmt="",prio=0,lat=None):
        i=Ins(op,ops,mods,tr,tw,cmt); i.prio=prio; i.lat_hint=lat
        (s.cur if s.cur is not None else s.out).append(i); return i
    def label(s,name):
        assert s.cur is None
        s.out.append(Ins("label",raw=name+":"))
    def raw(s,text):
        assert s.cur is None
        s.out.append(Ins("raw",raw=text))
    def comment(s,text):
        (s.cur if s.cur is not None else s.out).append(Ins("raw",raw="; "+text))
    def begin(s): assert s.cur is None; s.cur=[]
    def end(s,schedule=True,verbose=False,name=""):
        l=s.cur; s.cur=None
        l=[i for i in l if i.kind!="raw"]
        if schedule: l=schedule_region(l,verbose,name)
        if getattr(s,"post",None): l=s.post(l,name)
        s.out.append(Ins("raw",raw="; REGION_BEGIN "+name))
        s.out.extend(l)
        s.out.append(Ins("raw",raw="; REGION_END "+name))
    def waitcnt(s,vm=None,lgkm=None):
        t=[]
        if vm is not None: t.append(f"vmcnt({vm})")
        if lgkm is not None: t.append(f"lgkmcnt({lgkm})")
        i=Ins("s_waitcnt",(" ".join(t),)); i.vm=vm; i.lg=lgkm
        (s.cur if s.cur is not None else s.out).append(i); return i
    def finalize(s):
        l=insert_waits(s.out)
        l=insert_hazards(l)
        return "\n".join(("" if i.kind=="label" else "  ")+i.text() for i in l)+"\n"

VOP3_OPS=("v_cvt_pk","v_fma_f32","v_max3","v_min3","v_perm_b32","v_lshl_or","v_and_or","v_accvgpr","v_bfe","v_lshl_add","v_add3","v_pk_","v_med3","v_mad","v_bfi","v_or3","v_add_lshl")
def issue_cost(i):
    k=i.kind
    if k=="smfmac": return 12
    if k=="mfma": return 8
    if k=="trans": return 8
    if k=="permlane": return 8
    if k=="dpp": return 5
    if k=="valu":
        if i.op.startswith(VOP3_OPS): return 5
        if i.op.startswith("v_cndmask") and str(i.ops[3])!="vcc": return 5
        if i.op.startswith("v_cmp") and str(i.ops[0])!="vcc": return 5
        return 4
    if k=="barrier": return 8
    return 4
def vm_cost(x):
    if x.kind=="vmem_store":
        return 128 if "x4" in x.op else (64 if "x2" in x.op else 50)
    return 64
def result_lat(p,c,reg):
    if p.lat_hint is not None: return p.lat_hint
    k=p.kind
    if p.is_mfma():
        if c.is_mfma() and c.dst==p.dst and reg in c.dst and (c.kind=="smfmac" or True):
            if c.kind=="smfmac" or (isinstance(c.ops[3],R) and c.ops[3].regs()==p.dst):
                ab=set(c.ops[1].regs()+c.ops[2].regs())
                if reg not in ab: return 4*p.passes
        return issue_cost(p)+4*(8 if p.passes==4 else 12)
    if k=="ds_read": return 60
    if k=="ds_write": return 60
    if k in ("vmem_load",): return 500
    if k=="vmem_store": return 300
    if k=="smem": return 200
    if k=="trans": return 12 if not c.kind=="trans" else 8
    if p.is_valu():
        b=issue_cost(p)
        if c.is_mfma(): return b+8
        if c.kind in ("dpp","permlane"): return b+8
        if reg[0] in ("s","vcc") : return b+8
        return b
    if k=="barrier": return 8
    return 4
VMSTALL=2; VMFIFO=0; LOOK_MARGIN=20
def schedule_region(l,verbose=False,name=""):
    n=len(l)
    preds=[dict() for _ in range(n)]
    lastw={}; readers={}
    lastvm=None; lastlg=None
    for i,x in enumerate(l):
        rd=list(x.src)+[("tok",t) for t in x.tr]
        wr=list(x.dst)+[("tok",t) for t in x.tw]
        if x.is_valu() or x.is_mfma() or x.kind.startswith("ds") or x.kind.startswith("vmem"):
            rd.append(("exec",0))
        for r in rd:
            if r in lastw:
                j=lastw[r]; lat=result_lat(l[j],x,r) if r[0]!="tok" else (l[j].lat_hint if l[j].lat_hint is not None else {"ds_write":60,"barrier":12,"vmem_store":300,"vmem_load":500,"ds_read":64}.get(l[j].kind,4))
                preds[i][j]=max(preds[i].get(j,0),lat)
        for r in wr:
            if r in lastw:
                j=lastw[r]
                lat=1
                if l[j].is_mfma() and not (x.is_mfma() and x.dst==l[j].dst): lat=issue_cost(l[j])+4*(8 if l[j].passes==4 else 12)
                if l[j].kind in("ds_read","vmem_load"): lat=result_lat(l[j],x,r)
                preds[i][j]=max(preds[i].get(j,0),lat)
            for j in readers.get(r,[]):
                if j!=i:
                    lat=1
                    if l[j].is_mfma() and x.is_valu(): lat=issue_cost(l[j])+12
                    preds[i][j]=max(preds[i].get(j,0),lat)
        for y in x.after:
            j=l.index(y); preds[i][j]=max(preds[i].get(j,0),1)
        for r in rd: readers.setdefault(r,[]).append(i)
        for r in wr: lastw[r]=i; readers[r]=[]
    succs=[[] for _ in range(n)]
    for i in range(n):
        for j,lat in preds[i].items(): succs[j].append((i,lat))
    cp=[0]*n
    for i in range(n-1,-1,-1):
        cp[i]=max([lat+cp[k] for k,lat in succs[i]]+[issue_cost(l[i])])+l[i].prio
    done=[None]*n; order=[]; t=0; mfma_free=0; lds_free=0; port_free=0; vm_free=0
    fin=[None]*n
    remaining=set(range(n)); npred=[len(preds[i]) for i in range(n)]
    ready=[i for i in range(n) if npred[i]==0]
    def port_cost(x):
        if x.kind=="smfmac": return 12
        if x.kind=="mfma": return 8
        if x.is_valu():
            return issue_cost(x)
        return 0
    def lds_cost(x):
        if x.kind=="ds_read": return 16 if "128" in x.op else 8
        if x.kind=="ds_write": return 36 if "128" in x.op else 20
        return 0
    def start_time(i):
        x=l[i]
        rt=max([done[j]+fin[j]+lat for j,lat in preds[i].items()]+[0])
        if x.is_mfma(): rt=max(rt,mfma_free)
        if port_cost(x): rt=max(rt,port_free)
        if x.vm is True: rt=max(rt,vm_free-VMFIFO)
        return rt
    while remaining:
        cand=[(max(start_time(i),t),i) for i in ready]
        now=[(st,i) for st,i in cand if st<=t]
        best=None
        if now:
            now.sort(key=lambda z:(-cp[z[1]],z[1]))
            best=now[0]
            x=l[best[1]]
            blk=4*x.passes if x.is_mfma() else port_cost(x)
            for st,i in cand:
                if st>t and cp[i]>cp[best[1]]+LOOK_MARGIN and st-t<blk and (port_cost(l[i]) or l[i].is_mfma()) and (blk>4):
                    best=(st,i); break
        else:
            cand.sort(key=lambda z:(z[0],-cp[z[1]])); best=cand[0]
        bst,i=best; x=l[i]
        t=bst; done[i]=t; fin[i]=0
        if x.is_mfma(): mfma_free=t+4*x.passes
        pc=port_cost(x)
        if pc: port_free=t+pc
        lc=lds_cost(x)
        if lc:
            st=max(lds_free,t); lds_free=st+lc; fin[i]=lds_free-t-lc//4
        if x.vm is True:
            st=max(vm_free,t); vm_free=st+vm_cost(x)
            t+=VMSTALL*vm_cost(x)//4
        t+=4
        order.append(i); remaining.discard(i); ready.remove(i)
        for k,lat in succs[i]:
            npred[k]-=1
            if npred[k]==0: ready.append(k)
    if verbose:
        print(f"[sched {name}] n={n} est_cycles={t} critpath={max(cp)} barriers@{[done[i] for i in order if l[i].kind=='barrier']}")
    res=[]
    for i in order:
        l[i].idx=done[i]; res.append(l[i])
    return res

def insert_waits(l):
    out=[]; vmq=[]; lgq=[]
    def need(q,regs):
        pos=-1
        for idx,e in enumerate(q):
            if e & regs: pos=idx
        if pos<0: return None
        return len(q)-1-pos
    for x in l:
        if x.kind=="label" or x.kind=="branch":
            out.append(x)
            continue
        if x.kind=="waitcnt":
            if x.vm is not None:
                del vmq[:max(0,len(vmq)-x.vm)]
            if x.lg is not None:
                del lgq[:max(0,len(lgq)-x.lg)]
            out.append(x); continue
        if x.kind in("raw","nop","misc"):
            if x.kind=="raw" and x.raw.startswith("; QUEUE_RESET"): vmq=[]; lgq=[]
            out.append(x); continue
        touch=set(x.src)|set(x.dst)|set(("tok",t) for t in x.tr)
        nv=need(vmq,touch); nl=need(lgq,touch)
        if nv is not None or nl is not None:
            smem_pending=any(("smemflag",0) in e for e in lgq)
            if nl is not None and smem_pending: nl=0
            t=[]
            if nv is not None: t.append(f"vmcnt({min(nv,63)})"); del vmq[:len(vmq)-nv]
            if nl is not None: t.append(f"lgkmcnt({min(nl,15)})"); del lgq[:len(lgq)-nl]
            w=Ins("s_waitcnt",(" ".join(t),)); w.vm=None; w.lg=None
            out.append(w)
        out.append(x)
        if x.kind.startswith("vmem"):
            vmq.append(set(x.dst)|set(("tok",t) for t in x.tw))
        elif x.kind in("ds_read","ds_write"):
            lgq.append(set(x.dst)|set(("tok",t) for t in x.tw))
        elif x.kind=="smem":
            lgq.append(set(x.dst)|{("smemflag",0)})
    return out

def insert_hazards(l):
    out=[]; hist=[]
    def states(i):
        if i.kind=="nop": return int(i.ops[0])+1
        if i.kind in("raw","label"): return 0
        return 1
    def required(p,c):
        pd=set(p.dst); cs=set(c.src); cd=set(c.dst); req=0
        if p.is_mfma():
            big=p.passes==8
            if c.is_mfma():
                ab=set(c.ops[1].regs()+c.ops[2].regs())
                if c.kind=="smfmac": ab|=set(c.ops[3].regs()); cc=set(c.ops[0].regs())
                else: cc=set(c.ops[3].regs()) if isinstance(c.ops[3],R) else set()
                if pd&ab: req=max(req,12 if big else 8)
                if pd&cc:
                    if cc==pd and c.passes==p.passes: pass
                    else: req=max(req,10 if big else 6)
                if (pd&cd) and not (pd&cc): req=max(req,10 if big else 6)
            elif c.is_valu() or c.kind.startswith("ds") or c.kind.startswith("vmem"):
                if pd&(cs|cd): req=max(req,12 if big else 8)
            if c.is_valu():
                pc=set(p.ops[3].regs()) if (p.kind=="mfma" and isinstance(p.ops[3],R)) else (set(p.dst) if p.kind=="smfmac" else set())
                if pc&cd: req=max(req,7 if big else 3)
            return req
        if p.is_valu():
            vd={r for r in pd if r[0] in("v","a")}; sd={r for r in pd if r[0] in("s","vcc")}
            if c.is_mfma() and vd&cs: req=max(req,2)
            if c.kind=="dpp" and vd&cs: req=max(req,2)
            if c.kind=="permlane" and vd&cs: req=max(req,2)
            if c.op in("v_readlane_b32","v_readfirstlane_b32") and vd&cs: req=max(req,1)
            if c.is_valu() and sd&cs: req=max(req,2)
            if c.op in("v_readlane_b32","v_writelane_b32") and sd&cs: req=max(req,4)
            if c.kind.startswith("vmem") and sd&cs: req=max(req,5)
            if p.kind=="trans" and c.is_valu() and c.kind!="trans" and vd&cs: req=max(req,1)
            if p.kind=="trans" and c.is_mfma() and vd&cs: req=max(req,2)
            if c.kind=="salu" and sd&cs: req=max(req,1)
            if ("exec",0) in pd and c.kind=="dpp": req=max(req,5)
            return req
        if p.kind=="vmem_store" and ("x3" in p.op or "x4" in p.op):
            data=set(p.ops[0].regs()) if p.op.startswith("buffer") else set(p.ops[1].regs())
            if data&cd: req=max(req,2)
            return req
        if p.kind=="salu" and ("m0",0) in pd and (c.kind=="vmem_lds"): return 1
        return 0
    t=0; last_mfma=None
    for x in l:
        if x.kind in("raw","label"):
            out.append(x); continue
        tx=t
        if x.is_mfma() and last_mfma is not None: tx=max(tx,last_mfma[1]+last_mfma[0].passes)
        need=0
        if x.kind=="branch":
            for p,tp in hist:
                worst=0
                if p.is_mfma(): worst=12 if p.passes==8 else 8
                elif p.is_valu(): worst=5 if any(r[0] in("s","vcc","exec") for r in p.dst) else 2
                elif p.kind=="vmem_store" and ("x3" in p.op or "x4" in p.op): worst=2
                elif p.kind=="salu" and ("m0",0) in p.dst: worst=1
                if p.is_valu() and x.src and set(x.src)&set(p.dst) and len(p.dst)==1: worst=0
                need=max(need,worst-(tx-tp-1)-1)
        else:
            for p,tp in hist:
                need=max(need,required(p,x)-(tx-tp-1))
        if need>0:
            k_total=tx+need-t
            while k_total>0:
                k=min(k_total,16); out.append(Ins("s_nop",(k-1,))); k_total-=k
            tx=tx+need
        out.append(x)
        st=(int(x.ops[0])+1) if x.kind=="nop" else 1
        t=tx+st
        if x.is_mfma(): last_mfma=(x,tx)
        hist=[(p,tp) for p,tp in hist if t-tp<14]
        if x.is_mfma() or x.is_valu() or x.kind in("vmem_store","salu"): hist.append((x,tx))
    return out
```

```python
from asm import *
from layout import *

L_STG=0
L_X1=8192
L_X2=16384
L_O=18432
L_SELR=20480
L_ZERO=16384
L_ONES=16400
L_W=21504
L_TOTAL=L_W+131072

def mem_col(kk,k):
    ga=k>>4; p=k&15; m=p>>2; hf=(p>>1)&1; b=p&1; sa=2*m+b
    n=4*ga+(sa&3); t=4*(kk&1)+2*hf+(sa>>2)
    return 128*(kk>>1)+8*n+t
def wo_row(ks,k):
    a_=k>>5; gb=(k>>3)&3; c=k&7
    return 64*ks+32*a_+8*gb+2*(c&3)+(c>>2)

def placement():
    pl={}; areg=0; slot=0; vreg=128
    def put_reg(key):
        nonlocal areg,vreg
        if areg<256: pl[key]=('a',areg); areg+=8
        else: pl[key]=('v',vreg); vreg+=8
    for m in ('q','k'):
        for kk in range(8):
            for t in range(2):
                if kk<2: pl[(m,t,kk)]=('l',slot); slot+=1
                else: put_reg((m,t,kk))
    for kk in range(8):
        for t in range(2):
            if kk<4: put_reg(('v',t,kk))
            else: pl[('v',t,kk)]=('l',slot); slot+=1
    for t in range(8):
        for ks in range(2): put_reg(('o',t,ks))
    assert slot==16 and areg==256 and vreg==256,(slot,areg,vreg)
    return pl
PL=placement()

vIdx=v(2); vPart=v(3); vSel=v(4,2); vL16=v(6); vW2k=v(7); vWl=v(8); vKX=v(9); vVT=v(10); vMG=v(11)
vKMs=v(12); vVMs=v(13); vC0=v(14); vOW=v(15); QT=v(16,4); KT=v(20,4); KXf=v(24,8); VTf=v(32,8)
AF=v(40,32); ACC=v(72,24); WB=v(96,32); T0=v(0); T1=v(1)

Q0=ACC[0:4]; Q1=ACC[4:8]; K0=ACC[8:12]; K1=ACC[12:16]; V0=ACC[16:20]; V1=ACC[20:24]
SRD=s(4,4); sH=s(8); sWv=s(9); sStep=s(10); sODD=s(12,2)
sInb=s(16,2); sRed=s(24); sRed2=s(25); sPub=s(26); sPoll=s(27); sKX=s(28); sKX2=s(29); sVT=s(30); sKM=s(31); sVM=s(32)
sRstI=s(33); sRstM=s(34); sSlot=s(35); sCI=s(18,2); sCR=s(20); sCRst=s(21,3); sBase=s(36); sC=s(38); sTmp=s(40,2); sTmp2=s(42,2); sCnt=s(44); sFlagOff=s(45); sSpin=s(46)
SRDA=s(48,4); SRDD=s(52,4); sT=s(56,8)

def wreg(key, wbmap):
    k,n=PL[key]
    if k=='a': return a(n,8)
    if k=='v': return v(n,8)
    return WB[8*wbmap[key]:8*wbmap[key]+8]

def emit_weights_prologue(p):
    lane=v(1)
    n_=v(16); gb=v(17); vo=v(18); tmp=v(19)
    p("v_and_b32",n_,15,lane); p("v_lshrrev_b32",gb,4,lane)
    p("v_and_b32",tmp,1,gb); p("v_lshrrev_b32",vo,1,gb); p("v_lshlrev_b32",vo,5,vo); p("v_add_u32",vo,vo,tmp)
    p("v_lshlrev_b32",vo,13,vo); p("v_lshlrev_b32",tmp,2,n_); p("v_add_u32",vo,vo,tmp)
    p("s_lshl_b32",sT[0],sWv,6); p("s_lshl_b32",sT[1],sH,8); p("s_add_u32",sT[0],sT[0],sT[1]); p("v_add_u32",vo,sT[0],vo)
    vo2=v(20)
    p("v_lshlrev_b32",vo2,13,gb); p("v_lshlrev_b32",tmp,4,n_); p("v_add_u32",vo2,vo2,tmp)
    p("s_lshl_b32",sT[0],sWv,8); p("s_lshl_b32",sT[1],sH,17); p("s_add_u32",sT[0],sT[0],sT[1]); p("v_add_u32",vo2,sT[0],vo2)
    SELLO=s(70); SELHI=s(71)
    p("s_mov_b32",SELLO,"0x05040100"); p("s_mov_b32",SELHI,"0x07060302")
    TMP0=24
    def dest_write(key,r,src_lo_or_hi):
        pass
    groups=[]
    for ks in range(2):
        for half in range(2):
            groups.append(('o',ks,half))
    for m in ('q','k','v'):
        for kk in range(8): groups.append((m,kk,None))
    ka={'q':KA_WQ,'k':KA_WK,'v':KA_WV,'o':KA_WO}
    NB=3
    cur=None
    def issue(gi):
        g=groups[gi]; base=TMP0+32*(gi%NB)
        nonlocal cur
        if cur!=g[0]:
            cur=g[0]
            p("s_load_dwordx2",SRDA[0:2],s(0,2),ka[g[0]])
            p.waitcnt(lgkm=0)
        if g[0]=='o':
            ks,half=g[1],g[2]
            for c in range(8):
                row=64*ks+32*half+2*(c&3)+(c>>2)
                so=sT[2+(c&3)]
                p("s_mov_b32",so,row*1024)
                p("buffer_load_dwordx4",v(base+4*c,4),vo2,SRDA,so,mods="offen")
        else:
            kk=g[1]
            for sb in range(16):
                a_=sb>>3; c=sb&7
                row=128*(kk>>1)+64*a_+16*(c>>2)+8*(c&1)+4*(kk&1)+2*((c>>1)&1)
                for gbv in range(4):
                    assert mem_col(kk,32*a_+8*gbv+c)==row+32*(gbv>>1)+(gbv&1)
                so=sT[2+(sb&3)]
                p("s_mov_b32",so,row*8192)
                p("buffer_load_dword",v(base+sb),vo,SRDA,so,mods="offen")
    def wr(key,r,srcs,sel):
        k,n=PL[key]
        if k=='v': p("v_perm_b32",v(n+r),srcs[1],srcs[0],sel)
        elif k=='a':
            t=v(120+(r&3)); p("v_perm_b32",t,srcs[1],srcs[0],sel); p("v_accvgpr_write_b32",a(n+r),t)
        else:
            p("v_perm_b32",v(120+(r&3)),srcs[1],srcs[0],sel)
            if (r&3)==3: p("ds_write_b128",vWl,v(120,4),mods=f"offset:{n*2048+(r>>2)*1024}")
    def process(gi):
        g=groups[gi]; base=TMP0+32*(gi%NB)
        if g[0]=='o':
            ks,half=g[1],g[2]
            for t in range(8):
                for rr in range(4):
                    d=t>>1
                    s0=v(base+4*(2*rr)+d); s1=v(base+4*(2*rr+1)+d)
                    wr(('o',t,ks),4*half+rr,(s0,s1),SELLO if (t&1)==0 else SELHI)
        else:
            kk=g[1]
            for t in range(2):
                for r in range(8):
                    wr((g[0],t,kk),r,(v(base+2*r),v(base+2*r+1)),SELLO if t==0 else SELHI)
    p("s_mov_b32",SRDA[2],4*MB); p("s_mov_b32",SRDA[3],"0x20000")
    for gi in range(NB-1): issue(gi)
    for gi in range(len(groups)):
        if gi+NB-1<len(groups): issue(gi+NB-1)
        process(gi)

def emit_consts(p):
    lane=v(1); n_=v(16); g=v(17); t=v(18); t2=v(19); t3=v(20)
    p("v_and_b32",n_,15,lane); p("v_lshrrev_b32",g,4,lane)
    p("s_mov_b32",sODD[0],"0xaaaaaaaa"); p("s_mov_b32",sODD[1],"0xaaaaaaaa")
    p("v_mov_b32",t,"0x4444"); p("v_mov_b32",t2,"0xeeee"); p("v_cndmask_b32",vIdx,t,t2,sODD)
    p("v_lshlrev_b32",vL16,4,lane)
    p("s_lshl_b32",sT[0],sWv,11); p("v_add_u32",vW2k,sT[0],vL16)
    p("s_lshl_b32",sT[0],sWv,15); p("s_add_u32",sT[0],sT[0],L_W); p("v_add_u32",vWl,sT[0],vL16)
    p("v_lshrrev_b32",t,1,n_)
    p("v_lshlrev_b32",t2,1,g)
    p("v_mov_b32",t3,"0x3f803f80")
    p("v_cmp_eq_u32",VCC,t,t2); p("v_cndmask_b32",vSel[0],0,t3,VCC)
    p("v_add_u32",t2,1,t2)
    p("v_cmp_eq_u32",VCC,t,t2); p("v_cndmask_b32",vSel[1],0,t3,VCC)
    p("v_and_b32",t,7,n_)
    R4=v(24,4)
    for r in range(4):
        p("v_mov_b32",t2,"0x3f80"); p("v_cmp_eq_u32",VCC,2*r,t); p("v_cndmask_b32",R4[r],0,t2,VCC)
        p("v_mov_b32",t2,"0x3f800000"); p("v_cmp_eq_u32",VCC,2*r+1,t); p("v_cndmask_b32",R4[r],R4[r],t2,VCC)
    p("v_add_u32",t,L_SELR,vL16)
    p("ds_write_b128",t,R4)
    Z4=v(28,4); O4=v(32,4)
    for i in range(4): p("v_mov_b32",Z4[i],0); p("v_mov_b32",O4[i],"0x3f803f80")
    p("v_mov_b32",vC0,0)
    p("ds_write_b128",vC0,Z4,mods=f"offset:{L_ZERO}"); p("ds_write_b128",vC0,O4,mods=f"offset:{L_ONES}")
    p("v_lshlrev_b32",vKX,6,n_); p("v_lshlrev_b32",t,4,g); p("v_add_u32",vKX,vKX,t)
    p("s_lshl_b32",sT[0],sH,19); p("s_lshl_b32",sT[1],sWv,11); p("s_add_u32",sT[0],sT[0],sT[1])
    p("v_add_u32",vKX,sT[0],vKX)
    p("v_and_b32",t,1,n_); p("v_lshlrev_b32",t,5,t); p("v_lshlrev_b32",t2,8,g); p("v_add_u32",t,t,t2)
    p("v_bfe_u32",t2,n_,2,1); p("v_lshlrev_b32",t2,4,t2); p("v_add_u32",t,t,t2)
    p("v_bfe_u32",t2,n_,1,1); p("v_lshlrev_b32",t2,3,t2); p("v_add_u32",t,t,t2)
    p("s_lshr_b32",sT[0],sH,2); p("s_lshl_b32",sT[0],sT[0],10); p("s_and_b32",sT[1],sH,3); p("s_lshl_b32",sT[1],sT[1],6); p("s_add_u32",sT[0],sT[0],sT[1])
    p("v_add_u32",vMG,sT[0],t)
    p("v_lshlrev_b32",t,13,g); p("v_lshlrev_b32",t2,4,n_); p("v_add_u32",vPart,t,t2)
    p("v_lshrrev_b32",t,1,n_); p("v_lshlrev_b32",t,6,t); p("v_lshlrev_b32",t2,4,g); p("v_add_u32",t,t,t2)
    p("s_lshl_b32",sT[0],sH,11); p("s_lshl_b32",sT[1],sWv,9); p("s_add_u32",sT[0],sT[0],sT[1]); p("v_add_u32",vKMs,sT[0],t)
    p("v_lshlrev_b32",t,3,n_); p("v_lshlrev_b32",t2,9,g); p("v_add_u32",t,t,t2)
    p("s_lshl_b32",sT[0],sH,11); p("s_lshl_b32",sT[1],sWv,7); p("s_add_u32",sT[0],sT[0],sT[1]); p("v_add_u32",vVMs,sT[0],t)
    p("v_lshrrev_b32",t,1,g); p("v_lshlrev_b32",t,8,t); p("v_lshlrev_b32",t2,4,n_); p("v_add_u32",t,t,t2)
    p("v_and_b32",t2,1,g); p("v_lshlrev_b32",t2,3,t2); p("v_add_u32",t,t,t2)
    p("s_lshr_b32",sT[0],sWv,1); p("s_lshl_b32",sT[0],sT[0],10); p("s_and_b32",sT[1],sWv,1); p("s_lshl_b32",sT[1],sT[1],9)
    p("s_add_u32",sT[0],sT[0],sT[1]); p("s_add_u32",sT[0],sT[0],L_O); p("v_add_u32",vOW,sT[0],t)
    p("s_mov_b32",sC,"0x3e0293ee")
    p("s_lshl_b32",sT[0],sH,8); p("s_lshl_b32",sT[1],sWv,16); p("s_add_u32",sCI[0],sT[0],sT[1]); p("s_add_u32",sCI[1],sCI[0],4*8192)
    p("s_lshl_b32",sCR,sH,13)
    p("s_sub_u32",sT[0],sWv,1); p("s_mul_i32",sT[0],sT[0],3)
    for i in range(3):
        p("s_add_u32",sT[1],sT[0],i); p("s_min_u32",sT[1],sT[1],7); p("s_lshl_b32",sT[1],sT[1],10); p("s_add_u32",sCRst[i],sT[1],sCR)
    p("s_mov_b32",sSlot,0)
    emit_slot_regs(p)
    p("s_mov_b32",sPub,WS_MEMG+8192); p("s_mov_b32",sRstM,WS_MEMG)
    p("s_lshl_b32",sT[0],sWv,11); p("s_add_u32",sPoll,sT[0],WS_MEMG+8192)
    p("s_mov_b32",sKX,WS_KX+8192); p("s_mov_b32",sVT,WS_VT)
    p("s_mov_b32",sKM,WS_KM); p("s_mov_b32",sVM,WS_VMT)
    p("s_mov_b32",sStep,0)

def emit_slot_regs(p):
    p("s_lshl_b32",sT[6],sSlot,18); p("s_add_u32",sT[6],sT[6],WS_INBOX)
    p("s_add_u32",sInb[0],sT[6],sCI[0]); p("s_add_u32",sInb[1],sT[6],sCI[1])
    p("s_add_u32",sRed,sT[6],sCR); p("s_add_u32",sRed2,sRed,4096)
def emit_clear_comm(p):
    M1=v(24,4)
    for i in range(4): p("v_mov_b32",M1[i],-1)
    p("s_lshl_b32",sT[0],sH,13); p("s_lshl_b32",sT[1],sWv,11); p("s_add_u32",sT[0],sT[0],sT[1]); p("s_add_u32",sT[0],sT[0],WS_INBOX)
    p("s_add_u32",sT[1],sT[0],262144); p("s_add_u32",sT[2],sT[1],262144)
    for so in (sT[0],sT[1],sT[2]):
        for u in range(2): p("buffer_store_dwordx4",M1,vL16,SRD,so,mods=f"offen offset:{u*1024} {{ST}}")
    p("s_mov_b32",sT[0],WS_MEMG); p("s_mov_b32",sT[1],WS_MEMG+8192)
    for so in (sT[0],sT[1]): p("buffer_store_dwordx2",M1[0:2],vMG,SRD,so,mods="offen {ST}")

def emit_mem0_stage(p):
    lane=v(1); i_=v(16); ga=v(17); t=v(18); base=v(19); r=v(20); hf=v(21)
    p("s_load_dwordx2",SRDA[0:2],s(0,2),KA_MEM0); p.waitcnt(lgkm=0)
    p("s_mov_b32",SRDA[2],8192)
    p("v_and_b32",i_,15,lane); p("v_lshrrev_b32",ga,4,lane)
    p("v_lshrrev_b32",r,1,i_); p("v_and_b32",hf,1,i_)
    p("v_lshlrev_b32",base,10,r); p("v_lshlrev_b32",t,2,hf); p("v_add_u32",base,base,t); p("v_lshlrev_b32",t,6,ga); p("v_add_u32",base,base,t)
    p("s_lshl_b32",sT[0],sWv,8); p("v_add_u32",base,sT[0],base)
    D=v(24,16); P=v(40,8)
    for u in range(2):
        for sa in range(8):
            col=8*(sa&3)+4*u+(sa>>2)
            p("buffer_load_ushort",D[8*u+sa],base,SRDA,0,mods=f"offen offset:{col*2}")
    for u in range(2):
        for d in range(4):
            p("v_lshl_or_b32",P[4*u+d],D[8*u+2*d+1],16,D[8*u+2*d])
        p("ds_write_b128",vW2k,P[4*u:4*u+4],mods=f"offset:{L_STG+u*1024}")

def zero(p,r,**kw):
    for i in range(0,r.c,2): p("v_mov_b64",r[i:i+2],0,**kw)


QP="quad_perm:[1,0,3,2] row_mask:0xf bank_mask:0xf"
def ldszero(p,r,**kw):
    p("ds_read_b128",r,vC0,mods=f"offset:{L_ZERO}",**kw)
def emit_region1(p, last=False):
    SM="v_smfmac_f32_16x16x64_bf16"; TM="v_mfma_f32_16x16x16_bf16"; DM="v_mfma_f32_16x16x32_bf16"
    p.begin()
    for kk in range(8):
        p("ds_read_b128",AF[4*kk:4*kk+4],vL16,mods=f"offset:{L_STG+kk*1024}")
    wb={}
    def ldsload(key,buf,prio=0):
        wb[key]=buf
        slot=PL[key][1]
        for q in range(2):
            p("ds_read_b128",WB[8*buf+4*q:8*buf+4*q+4],vWl,mods=f"offset:{slot*2048+q*1024}",prio=prio)
    for kk in range(2):
        for t in range(2): wb[('q',t,kk)]=2*kk+t
    if not last and not NO_PF:
        p("buffer_load_dwordx4",VTf[0:4],vKX,SRD,sVT,mods="offen sc1",lat=900,prio=PRIO_VT); p("buffer_load_dwordx4",VTf[4:8],vKX,SRD,sVT,mods="offen offset:1024 sc1",lat=900,prio=PRIO_VT)
    acc={'q':(Q0,Q1),'k':(K0,K1),'v':(V0,V1)}
    def phase(m,prio,kks=range(8)):
        for kk in kks:
            for t in range(2):
                key=(m,t,kk)
                p(SM,acc[m][t],AF[4*kk:4*kk+4],wreg(key,wb),vIdx,prio=prio)
                if PL[key][0]=='l':
                    b=wb[key]; nxt=None
                    if m=='q': nxt=('k',t,kk)
                    elif m=='k': nxt=('v',t,kk+4)
                    elif m=='v' and kk<6: nxt=('v',t,kk+2)
                    elif m=='v' and not last: nxt=('q',t,kk-6)
                    if nxt is not None: ldsload(nxt,b)
    def transpose(X0,X1,TT,prio=0):
        p("v_cvt_pk_bf16_f32",TT[0],X0[0],X0[1],prio=prio); p("v_cvt_pk_bf16_f32",TT[1],X0[2],X0[3],prio=prio)
        p("v_cvt_pk_bf16_f32",TT[2],X1[0],X1[1],prio=prio); p("v_cvt_pk_bf16_f32",TT[3],X1[2],X1[3],prio=prio)
        p(TM,X0,TT[0:2],vSel,0,prio=prio); p(TM,X1,TT[2:4],vSel,0,prio=prio)
        for j in range(4): p("v_cvt_pk_bf16_f32",TT[j],X0[j],X1[j],prio=prio)
    if not last:
        phase('q',PRIO_Q)
    else:
        for kk in range(2):
            for t in range(2): ldsload(('k',t,kk),2*kk+t)
    phase('k',PRIO_K)
    if not last:
        transpose(Q0,Q1,QT)
        p(DM,Q0,KXf[0:4],QT,0); p(DM,Q1,KXf[4:8],QT,0)
        for j in range(4): p("v_cndmask_b32",Q0[j],Q0[j],Q1[j],sODD)
        p("ds_write_b128",vW2k,Q0,mods=f"offset:{L_X1}",tw=["X1"])
    transpose(K0,K1,KT)
    if not NO_KVST: p("buffer_store_dwordx4",KT,vKMs,SRD,sKM,mods="offen sc1")
    if not last:
        p(DM,K0,KT,QT,0)
        p("v_mov_b32",K0[1],K0[2])
        p("ds_write_b64",vW2k,K0[0:2],mods=f"offset:{L_X1+1024}",tw=["X2"])
        p("s_barrier",tr=["X1"],tw=["X1pub"])
        XA=[Q0,Q1,KXf[0:4],KXf[4:8]]
        for w_ in range(4): p("ds_read_b128",XA[w_],vL16,mods=f"offset:{L_X1+w_*2048}",tr=["X1pub"])
        for j in range(4):
            p("v_add_f32",XA[0][j],XA[0][j],XA[1][j]); p("v_add_f32",XA[2][j],XA[2][j],XA[3][j]); p("v_add_f32",XA[0][j],XA[0][j],XA[2][j])
        SX=XA[0]
        mx=T0; t1=T1
        p("v_max3_f32",mx,SX[0],SX[1],SX[2]); p("v_max_f32",mx,mx,SX[3]); p("v_max_f32_dpp",mx,mx,mx,mods=QP)
        p("s_barrier",tr=["X2","X1pub"],tw=["X2pub"])
        XM=[K1[0:2],K1[2:4],Q1[0:2],Q1[2:4]]
        for w_ in range(4): p("ds_read_b64",XM[w_],vL16,mods=f"offset:{L_X1+1024+w_*2048}",tr=["X2pub"])
        for j in range(2):
            p("v_add_f32",XM[0][j],XM[0][j],XM[1][j]); p("v_add_f32",XM[2][j],XM[2][j],XM[3][j]); p("v_add_f32",XM[0][j],XM[0][j],XM[2][j])
        SMm=XM[0]
        if not NO_PF: p("buffer_load_dwordx4",KXf[0:4],vKX,SRD,sKX,mods="offen sc1"); p("buffer_load_dwordx4",KXf[4:8],vKX,SRD,sKX,mods="offen offset:1024 sc1")
    phase('v',0,[4,5,0,1,2,3,6,7])
    for X in (V0,V1):
        p("v_add_f32",X[0],X[0],X[1]); p("v_add_f32",X[2],X[2],X[3])
    p("v_cvt_pk_bf16_f32",V0[0],V0[0],V0[2]); p("v_cvt_pk_bf16_f32",V0[1],V1[0],V1[2]); p("v_cvt_pk_bf16_f32",V1[0],V1[0],V1[2]); p("v_mov_b32",V1[1],0)
    if not NO_KVST: p("buffer_store_dwordx2",V0[0:2],vVMs,SRD,sVM,mods="offen sc1")
    if last:
        p.end(name="last",verbose=True); return
    BA=[AF[4*t:4*t+4] for t in range(8)]
    for t in range(8): ldszero(p,BA[t])
    p("v_max3_f32",mx,mx,SMm[0],SMm[1])
    p("v_mov_b32",t1,mx); p("v_permlane16_swap_b32",mx,t1); p("v_max_f32",mx,mx,t1)
    p("v_mov_b32",t1,mx); p("v_permlane32_swap_b32",mx,t1); p("v_max_f32",mx,mx,t1)
    p("v_mul_f32",mx,sC,mx)
    E=[SX[0],SX[1],SX[2],SX[3],SMm[0],SMm[1]]
    for x in E: p("v_fma_f32",x,x,sC,Neg(mx))
    for x in E: p("v_exp_f32",x,x)
    PO=K1[2:4]; PN=Q1[0:2]; PX=QT; PM=Q1[2:4]
    p("v_cvt_pk_bf16_f32",PO[0],SX[0],SX[1]); p("v_cvt_pk_bf16_f32",PO[1],SX[2],SX[3])
    p("v_mov_b32_dpp",PN[0],PO[0],mods=QP); p("v_mov_b32_dpp",PN[1],PO[1],mods=QP)
    p("v_cndmask_b32",PX[0],PO[0],PN[0],sODD); p("v_cndmask_b32",PX[1],PO[1],PN[1],sODD)
    p("v_cndmask_b32",PX[2],PN[0],PO[0],sODD); p("v_cndmask_b32",PX[3],PN[1],PO[1],sODD)
    p("v_cvt_pk_bf16_f32",PM[0],SMm[0],SMm[1]); p("v_mov_b32",PM[1],0)
    ON=KT
    p("ds_read_b128",ON,vC0,mods=f"offset:{L_ONES}")
    LS=Q0
    p(DM,LS,ON,PX,0); p(TM,LS,ON[0:2],PM,LS)
    O=[K0,V1]; VV=[V0,None]
    O=[K0,K1]
    AV=[V0[0:2],V1[0:2]]
    for t in range(2):
        p(DM,O[t],VTf[4*t:4*t+4],PX,0)
        p(TM,O[t],AV[t],PM,O[t])
    sm=T1
    p("v_rcp_f32",sm,LS[0])
    OP=PN
    for t in range(2):
        p("v_cndmask_b32",O[t][0],O[t][0],O[t][2],sODD); p("v_cndmask_b32",O[t][1],O[t][1],O[t][3],sODD)
        p("v_mul_f32",O[t][0],O[t][0],sm); p("v_mul_f32",O[t][1],O[t][1],sm)
        p("v_cvt_pk_bf16_f32",OP[t],O[t][0],O[t][1])
    p("ds_write_b64",vOW,OP,mods="",tw=["O"])
    p("s_barrier",tr=["O","X2pub"],tw=["Opub"])
    OA=[Q0,Q1]
    for ks in range(2): p("ds_read_b128",OA[ks],vL16,mods=f"offset:{L_O+ks*1024}",tr=["Opub"])
    for t in range(8):
        for ks in range(2): p(SM,BA[t],OA[ks],wreg(('o',t,ks),wb),vIdx)
    PQ=[K0,K1]
    for t in range(8):
        pr=(8-t)*30
        p("v_add_f32",BA[t][0],BA[t][0],BA[t][1],prio=0); p("v_add_f32",BA[t][2],BA[t][2],BA[t][3])
        p("v_cvt_pk_bf16_f32",PQ[t>>2][t&3],BA[t][0],BA[t][2],prio=pr)
        if (t&3)==3: p("buffer_store_dwordx4",PQ[t>>2],vPart,SRD,sInb[t>>2],mods="offen {ST}",prio=pr)
    p.end(name="region1",verbose=True)
PRIO_VT=300
PRIO_Q=0; PRIO_K=0; NO_KVST=False; NO_PF=False; NO_RST=False

FINE=False
def fine_post(l,name):
    if name!="region1": return l
    out=[]; k=0; marks=[]
    nsm=0
    for x in l:
        if x.kind=="barrier":
            out.append(Ins("raw",raw=f"  s_memtime s[{FS[k]}:{FS[k]+1}]")); marks.append("preB"); k+=1
            out.append(x)
            out.append(Ins("raw",raw=f"  s_memtime s[{FS[k]}:{FS[k]+1}]")); marks.append("postB"); k+=1
            continue
        out.append(x)
        if x.kind=="smfmac":
            nsm+=1
            if nsm in (1,16,32):
                out.append(Ins("raw",raw=f"  s_memtime s[{FS[k]}:{FS[k]+1}]")); marks.append(f"smf{nsm}"); k+=1
    print(marks)
    return out
FS=[72,74,76,78,80,82,84,86,88,90,96,98]
PROF=False
def stamp(p,i):
    if PROF: p("s_memtime",s(72+2*i,2))
def emit_prof_accum(p):
    if not PROF: return
    for i in range(5):
        p("s_sub_u32",s(92),s(74+2*i),s(72+2*i)); p("s_add_u32",s(86+i),s(86+i),s(92))
    p("s_add_u32",s(91),s(91),sSpin); p("s_add_u32",s(93),s(93),s(94))
def emit_hops(p, tag):
    DM="v_mfma_f32_16x16x32_bf16"
    SelR=ACC[0:4]; D=ACC[4:8]; M1=ACC[16:20]
    stamp(p,1)
    if PROF: p("s_mov_b32",s(94),0)
    p("v_mov_b64",M1[0:2],-1); p("v_mov_b64",M1[2:4],-1)
    p("s_cmp_lg_u32",sWv,0); p("s_cbranch_scc1",f"L_{tag}_oth")
    p("v_add_u32",T0,L_SELR,vL16)
    p("ds_read_b128",SelR,T0)
    p("s_mov_b32",sSpin,0)
    emit_step_update_early(p)
    if D1: p("s_sleep",D1)
    p.label(f"L_{tag}_rretry")
    if RPROF: p.waitcnt(lgkm=0); p.out.append(Ins("raw",raw="  s_memtime s[96:97]"))
    for u in range(8): p("buffer_load_dwordx4",AF[4*u:4*u+4],vL16,SRD,sRed if u<4 else sRed2,mods=f"offen offset:{(u&3)*1024} sc1")
    if not RPROF: p.waitcnt(lgkm=0)
    for u in range(8):
        p.waitcnt(vm=7-u)
        if RPROF and u==0: p.out.append(Ins("raw",raw="  s_memtime s[98:99]"))
        if RPROF and u==7: p.out.append(Ins("raw",raw="  s_memtime s[100:101]"))
        p(DM,D,AF[4*u:4*u+4],SelR,0 if u==0 else D)
    if RPROF:
        p.waitcnt(lgkm=0)
        p("s_sub_u32",s(98),s(98),s(96)); p("s_sub_u32",s(100),s(100),s(96))
        p("s_add_u32",s(70),s(70),s(98)); p("s_add_u32",s(71),s(71),s(100)); p("s_add_u32",s(69),s(69),1)
    p("v_cmp_u_f32",VCC,D[0],D[1]); p("v_cmp_u_f32",sTmp,D[2],D[3]); p("s_or_b64",sTmp,sTmp,VCC)
    p("s_cbranch_scc1",f"L_{tag}_rcheck")
    p.label(f"L_{tag}_rpub")
    p("v_cvt_pk_bf16_f32",D[0],D[0],D[1]); p("v_cvt_pk_bf16_f32",D[1],D[2],D[3])
    p("buffer_store_dwordx2",D[0:2],vMG,SRD,sPub,mods="offen {ST}")
    p("buffer_store_dwordx2",M1[0:2],vMG,SRD,sRstM,mods="offen {ST}")
    if PROF: p("s_mov_b32",s(94),sSpin)
    p("s_branch",f"L_{tag}_b0")
    p.label(f"L_{tag}_oth")
    emit_step_update_early(p)
    p("s_add_u32",sT[0],sSlot,2); p("s_cmp_ge_u32",sT[0],3); p("s_cselect_b32",sT[1],3,0); p("s_sub_u32",sT[0],sT[0],sT[1])
    p("s_lshl_b32",sT[0],sT[0],18); p("s_add_u32",sT[0],sT[0],WS_INBOX)
    if DR: p("s_sleep",DR)
    for i in range(3):
        p("s_add_u32",sT[1+i],sT[0],sCRst[i])
        p("buffer_store_dwordx4",M1,vL16,SRD,sT[1+i],mods="offen {ST}")
    p.label(f"L_{tag}_b0")
    stamp(p,2)
    p("s_barrier")
    stamp(p,3)
    PR=AF[24:32]
    for i in range(6): ldszero(p,ACC[4*i:4*i+4])
    p("s_mov_b32",sSpin,0)
    if D2: p("s_sleep",D2)
    p.label(f"L_{tag}_pretry")
    p("buffer_load_dwordx4",PR[0:4],vL16,SRD,sPoll,mods="offen sc1"); p("buffer_load_dwordx4",PR[4:8],vL16,SRD,sPoll,mods="offen offset:1024 sc1")
    p.waitcnt(vm=0)
    p("ds_write_b128",vW2k,PR[0:4],mods=f"offset:{L_STG}"); p("ds_write_b128",vW2k,PR[4:8],mods=f"offset:{L_STG+1024}")
    p("v_max3_u32",T0,PR[0],PR[1],PR[2]); p("v_max3_u32",T1,PR[3],PR[4],PR[5]); p("v_max3_u32",T0,T0,PR[6],PR[7]); p("v_max_u32",T0,T0,T1)
    p("v_cmp_eq_u32",VCC,-1,T0)
    p("s_cbranch_vccnz",f"L_{tag}_pagain")
    stamp(p,4)
    emit_step_update_late(p)
    p.waitcnt(lgkm=0)
    p("s_barrier")
    if PROF:
        stamp(p,5); p.waitcnt(lgkm=0); emit_prof_accum(p)
DR=4; RPROF=False
def emit_hops_slow(p, tag):
    p.label(f"L_{tag}_rcheck")
    p("v_max3_u32",T0,AF[0],AF[1],AF[2])
    for i in range(3,31,2): p("v_max3_u32",T0,T0,AF[i],AF[i+1])
    p("v_max_u32",T0,T0,AF[31])
    p("v_cmp_eq_u32",VCC,-1,T0)
    p("s_cbranch_vccz",f"L_{tag}_rpub")
    p("s_add_u32",sSpin,sSpin,1); p("s_cmp_lt_u32",sSpin,SPIN_MAX); p("s_cbranch_scc1",f"L_{tag}_rretry")
    p("s_branch","L_bail")
    p.label(f"L_{tag}_pagain")
    p("s_add_u32",sSpin,sSpin,1); p("s_cmp_lt_u32",sSpin,SPIN_MAX); p("s_cbranch_scc1",f"L_{tag}_pretry")
    p("s_branch","L_bail")
D1=0; D2=0; SPIN_MAX=20000

def emit_step_update_early(p):
    for r in (sKX,sVT): p("s_add_u32",r,r,8192)
    for r in (sKM,sVM): p("s_add_u32",r,r,65536)
    p("s_add_u32",sStep,sStep,1)
def emit_step_update_late(p):
    for r in (sPub,sPoll,sRstM): p("s_xor_b32",r,r,"0x2000")
    p("s_add_u32",sSlot,sSlot,1); p("s_cmp_eq_u32",sSlot,3); p("s_cselect_b32",sSlot,0,sSlot)
    emit_slot_regs(p)

def emit_ticket(p, lab_exit):
    p("s_load_dwordx2",SRDD[0:2],s(0,2),KA_DBG); p.waitcnt(lgkm=0)
    p("s_mov_b32",SRDD[2],256); p("s_mov_b32",SRDD[3],"0x20000")
    p("s_getreg_b32",sT[0],"hwreg(HW_REG_XCC_ID, 0, 4)")
    p("v_lshrrev_b32",v(2),6,v(0)); p("v_readfirstlane_b32",sWv,v(2))
    p("s_cmp_lg_u32",sWv,0); p("s_cbranch_scc1","L_tk_wait")
    p("s_mov_b64",EXEC,1)
    p("v_mov_b32",v(3),1)
    p("s_cmp_lg_u32",sT[0],CHAIN_XCC); p("s_cbranch_scc1","L_tk_other")
    p("v_mov_b32",v(4),8); p("buffer_atomic_add",v(3),v(4),SRDD,0,mods="offen sc0 sc1"); p.waitcnt(vm=0)
    p("v_readfirstlane_b32",sT[1],v(3))
    p("s_cmp_lt_u32",sT[1],32); p("s_cbranch_scc1","L_tk_done")
    p.label("L_tk_other")
    p("v_mov_b32",v(3),1); p("v_mov_b32",v(4),12); p("buffer_atomic_add",v(3),v(4),SRDD,0,mods="offen sc0 sc1"); p.waitcnt(vm=0)
    p("v_readfirstlane_b32",sT[2],v(3))
    p("s_add_u32",sT[1],sT[2],32)
    p("s_cmp_lt_u32",sT[2],224); p("s_cbranch_scc1","L_tk_done")
    p("v_mov_b32",v(3),1); p("v_mov_b32",v(4),16); p("buffer_store_dword",v(3),v(4),SRDD,0,mods="offen sc1"); p.waitcnt(vm=0)
    p("v_mov_b32",v(4),8); p("buffer_atomic_add",v(3),v(4),SRDD,0,mods="offen sc0 sc1"); p.waitcnt(vm=0)
    p("v_readfirstlane_b32",sT[1],v(3))
    p.label("L_tk_done")
    p("v_mov_b32",v(3),sT[1]); p("v_mov_b32",v(4),0); p("ds_write_b32",v(4),v(3)); p.waitcnt(lgkm=0)
    p("s_mov_b64",EXEC,-1)
    p.label("L_tk_wait")
    p("s_barrier")
    p("v_mov_b32",v(4),0); p("ds_read_b32",v(3),v(4)); p.waitcnt(lgkm=0)
    p("v_readfirstlane_b32",sH,v(3))
    p("s_barrier")
    if lab_exit:
        p("s_cmp_ge_u32",sH,32); p("s_cbranch_scc1",lab_exit)
CHAIN_XCC=0

def emit_chain_role(p, force=None):
    p("v_and_b32",v(1),63,v(0)); p("v_lshrrev_b32",v(2),6,v(0))
    p("s_load_dwordx2",SRD[0:2],s(0,2),KA_WS)
    p("s_load_dwordx2",SRDD[0:2],s(0,2),KA_DBG)
    p("v_readfirstlane_b32",sWv,v(2))
    p.waitcnt(lgkm=0)
    p("s_mov_b32",SRD[2],WS_SIZE); p("s_mov_b32",SRD[3],"0x20000")
    p("s_mov_b32",SRDD[2],256); p("s_mov_b32",SRDD[3],"0x20000")
    emit_consts(p)
    n0=len(p.out)
    emit_clear_comm(p)
    for x in p.out[n0:]: x.mods=x.mods.replace("{ST}","sc1")
    emit_weights_prologue(p)
    emit_mem0_stage(p)
    if HOOK_PRE: HOOK_PRE(p)
    p("s_mov_b32",sT[0],WS_KX)
    p("buffer_load_dwordx4",KXf[0:4],vKX,SRD,sT[0],mods="offen sc1")
    p("buffer_load_dwordx4",KXf[4:8],vKX,SRD,sT[0],mods="offen offset:1024 sc1")
    p.waitcnt(vm=0,lgkm=0)
    p("s_barrier")
    for kk in range(2):
        for t in range(2):
            slot=PL[('q',t,kk)][1]
            for q in range(2): p("ds_read_b128",WB[8*(2*kk+t)+4*q:8*(2*kk+t)+4*q+4],vWl,mods=f"offset:{slot*2048+q*1024}")
    zero(p,ACC)
    p("v_mov_b32",T0,1); p("v_mov_b32",T1,0)
    p("s_cmp_lg_u32",sWv,0); p("s_cbranch_scc1","L_c_gb_wait")
    p("s_mov_b64",EXEC,1)
    p("buffer_atomic_add",T0,T1,SRDD,0,mods="offen sc1")
    p("s_mov_b64",EXEC,-1)
    p.label("L_c_gb_wait")
    p("s_mov_b32",sSpin,0)
    p.label("L_c_gb_loop")
    p("buffer_load_dword",T0,T1,SRDD,0,mods="offen sc1")
    p.waitcnt(vm=0)
    p("v_readfirstlane_b32",sT[0],T0)
    p("s_cmp_ge_u32",sT[0],32); p("s_cbranch_scc1","L_c_gb_done")
    p("s_add_u32",sSpin,sSpin,1); p("s_cmp_lt_u32",sSpin,SPIN_MAX); p("s_cbranch_scc1","L_c_gb_loop")
    p("s_branch","L_bail")
    p.label("L_c_gb_done")
    p("v_mov_b32",T1,16); p("buffer_load_dword",T0,T1,SRDD,0,mods="offen sc1"); p.waitcnt(vm=0,lgkm=0)
    p("v_readfirstlane_b32",sT[0],T0)
    p("s_barrier")
    p("s_memtime",s(64,2))
    p.waitcnt(lgkm=0)
    if PROF:
        for i in range(86,95): p("s_mov_b32",s(i),0)
    modes=[("c",""),("d","sc1")]
    if force=="fast": modes=modes[:1]
    elif force=="slow": modes=modes[1:]
    else:
        p("s_cmp_lg_u32",sT[0],0); p("s_cbranch_scc1","L_d_step")
    for tag,st in modes:
        n0=len(p.out)
        if NSTEPS==0: p("s_branch",f"L_{tag}_last")
        p.label(f"L_{tag}_step")
        p.raw("; QUEUE_RESET")
        stamp(p,0)
        if FINE:
            p.post=fine_post
            p("s_memtime",s(66,2))
        emit_region1(p)
        if FINE:
            p("s_memtime",s(68,2))
            p.waitcnt(lgkm=0)
            p("s_cmp_lg_u32",sStep,30); p("s_cbranch_scc1","L_c_nofine")
            p("s_cmp_lg_u32",sH,5); p("s_cbranch_scc1","L_c_nofine")
            p("s_cmp_lg_u32",sWv,1); p("s_cbranch_scc1","L_c_nofine")
            p("s_mov_b64",EXEC,1)
            for i,r in enumerate(FS[:9]+[68]):
                p("s_sub_u32",s(92),s(r),s(66))
                p("v_mov_b32",T0,s(92)); p("v_mov_b32",T1,192); p("buffer_store_dword",T0,T1,SRDD,0,mods=f"offen offset:{4*i}")
            p.waitcnt(vm=0)
            p("s_mov_b64",EXEC,-1)
            p.label("L_c_nofine")
        emit_hops(p,tag)
        if HOOK_STEP: HOOK_STEP(p,tag)
        p("s_cmp_lt_u32",sStep,NSTEPS); p("s_cbranch_scc1",f"L_{tag}_step")
        p.label(f"L_{tag}_last")
        p.raw("; QUEUE_RESET")
        emit_region1(p,last=True)
        p.waitcnt(vm=0,lgkm=0)
        if HOOK_END: HOOK_END(p,tag)
        p("s_branch","L_c_fin")
        emit_hops_slow(p,tag)
        for x in p.out[n0:]:
            if x.raw is None: x.mods=x.mods.replace("{ST}",st)
    p.label("L_c_fin")
    if TIMING:
        p("s_memtime",s(66,2))
        p.waitcnt(lgkm=0)
        p("s_sub_u32",s(66),s(66),s(64))
        p("v_mov_b32",T0,s(66)); p("s_lshl_b32",sT[0],sH,2); p("s_add_u32",sT[0],sT[0],64); p("v_mov_b32",T1,sT[0])
        if PROF:
            p("s_cmp_lg_u32",sH,5); p("s_cbranch_scc1","L_c_noprof")
            p("s_cmp_gt_u32",sWv,1); p("s_cbranch_scc1","L_c_noprof")
            p("s_mov_b64",EXEC,1)
            p("s_lshl_b32",sT[1],sWv,5); p("s_add_u32",sT[1],sT[1],192)
            for i,r in enumerate([86,87,88,89,90,91,93]):
                p("v_mov_b32",v(4),s(r)); p("v_mov_b32",v(5),sT[1]); p("buffer_store_dword",v(4),v(5),SRDD,0,mods=f"offen offset:{4*i}")
            p.waitcnt(vm=0)
            p("s_mov_b64",EXEC,-1)
            p.label("L_c_noprof")
        p("s_cmp_lg_u32",sWv,0); p("s_cbranch_scc1","L_c_end")
        p("s_mov_b64",EXEC,1)
        p("buffer_store_dword",T0,T1,SRDD,0,mods="offen")
        p.waitcnt(vm=0)
        p.label("L_c_end")
    p("s_endpgm")
    p.label("L_bail")
    p("v_mov_b32",T0,"0xdead"); p("v_mov_b32",T1,4)
    p("s_mov_b64",EXEC,1)
    p("buffer_store_dword",T0,T1,SRDD,0,mods="offen")
    p.waitcnt(vm=0)
    p("s_endpgm")
HOOK_PRE=None; HOOK_STEP=None; HOOK_END=None; TIMING=True
NSTEPS=63
```

```python
import sys; sys.path.insert(0,'gen')
from asm import *; from layout import *; import roles; from roles import *
def k_mod():
    p=Prog()
    p("s_cmp_ge_u32",s(2),96); p("s_cbranch_scc1","L_mod_exit")
    p("s_mov_b32",sId,s(2))
    setup_common(p); emit_mod(p); p.waitcnt(vm=0)
    p.label("L_mod_exit"); p("s_endpgm")
    return p.finalize()
def k_ln1():
    p=Prog()
    p("s_cmp_ge_u32",s(2),32); p("s_cbranch_scc1","L_ln1_exit")
    setup_common(p); load_srd(p,SRDA,KA_X,2*MB)
    emit_modvec_to_lds(p,512,512,0,True); emit_modvec_to_lds(p,0,512,2048,False)
    p.waitcnt(lgkm=0); p("s_barrier")
    p("s_lshl_b32",sT[0],s(2),2); p("s_add_u32",sT[0],sT[0],sWv); p("s_lshl_b32",s(20),sT[0],14); p("s_add_u32",s(21),s(20),WS_H1)
    emit_ln_tile(p,SRDA,s(20),0,2048,s(21))
    p.waitcnt(vm=0)
    p.label("L_ln1_exit"); p("s_endpgm")
    return p.finalize()
def k_proj():
    p=Prog()
    p("s_cmp_ge_u32",s(2),48); p("s_cbranch_scc1","L_p_exit")
    setup_common(p)
    p("s_cmp_ge_u32",s(2),32); p("s_cbranch_scc1","L_p_q")
    p("s_mov_b32",s(20),s(2))
    emit_proj_weights(p,KA_WK,s(20),0); emit_proj_weights(p,KA_WV,s(20),128)
    p("s_lshl_b32",sT[0],s(20),19); p("s_add_u32",s(22),sT[0],WS_KX); p("s_add_u32",s(23),sT[0],WS_VT)
    emit_proj_loop(p,"pkv",('KQ','V'),(s(22),s(23)),64)
    p("s_endpgm")
    p.label("L_p_q")
    p("s_sub_u32",s(20),s(2),32); p("s_lshl_b32",s(20),s(20),1); p("s_add_u32",s(21),s(20),1)
    emit_proj_weights(p,KA_WQ,s(20),0); emit_proj_weights(p,KA_WQ,s(21),128)
    p("s_lshl_b32",sT[0],s(20),19); p("s_add_u32",s(22),sT[0],WS_QX); p("s_add_u32",s(23),s(22),1<<19)
    emit_proj_loop(p,"pq",('KQ','KQ'),(s(22),s(23)),64)
    p.label("L_p_exit"); p("s_endpgm")
    return p.finalize()

def k_attn(G):
    p=Prog()
    p("s_cmp_ge_u32",s(2),32*G); p("s_cbranch_scc1","L_a_exit")
    p("s_and_b32",sId,s(2),31); p("s_lshr_b32",s(11),s(2),5)
    setup_common(p)
    emit_attn_setup(p)
    load_srd(p,SRDB,KA_X,2*MB)
    p("s_mov_b32",sSeg,s(11)); p("s_mov_b32",s(12),0)
    p.label("L_a_loop"); p.raw("; QUEUE_RESET")
    p("s_lshl_b32",sT[0],s(11),1); p("s_add_u32",sT[0],sT[0],s(12)); p("s_lshl_b32",sT[0],sT[0],20); p("s_add_u32",s(13),sT[0],WS_APART)
    emit_attn_task(p,sSeg,s(13))
    p("s_lshl_b32",s(14),sSeg,7); p("s_add_u32",s(14),s(14),FL_AP)
    emit_signal(p,s(14),v(32),v(33))
    wait_flag(p,s(14),32,v(32),v(33),"ap",force=True)
    emit_attn_reduce(p,sSeg,s(13))
    p("s_xor_b32",s(12),s(12),1)
    p("s_add_u32",sSeg,sSeg,G); p("s_cmp_lt_u32",sSeg,64); p("s_cbranch_scc1","L_a_loop")
    p.label("L_a_exit"); p("s_endpgm")
    p.label("L_bail"); p("v_mov_b32",v(32),"0xdead"); p("v_mov_b32",v(33),8); p("s_mov_b64",EXEC,1)
    p("buffer_store_dword",v(32),v(33),SRDD,0,mods="offen"); p.waitcnt(vm=0); p("s_endpgm")
    return p.finalize()
def k_ffn(G):
    p=Prog()
    p("s_cmp_ge_u32",s(2),32*G); p("s_cbranch_scc1","L_f_exit")
    p("s_and_b32",sId,s(2),31); p("s_lshr_b32",s(11),s(2),5)
    setup_common(p)
    emit_ffn_setup(p)
    load_srd(p,SRDB,KA_OUT,2*MB)
    p("s_mov_b32",sSeg,s(11)); p("s_mov_b32",s(12),0)
    p.label("L_f_loop"); p.raw("; QUEUE_RESET")
    p("s_lshl_b32",sT[0],s(11),1); p("s_add_u32",sT[0],sT[0],s(12)); p("s_lshl_b32",sT[0],sT[0],20); p("s_add_u32",s(13),sT[0],WS_FPART)
    p("s_lshl_b32",s(14),sSeg,7); p("s_add_u32",s(14),s(14),FL_FP)
    p("s_cmp_ge_u32",sId,22); p("s_cbranch_scc1","L_f_noprod")
    emit_ffn_task(p,sSeg,s(13))
    emit_signal(p,s(14),v(32),v(33))
    p.label("L_f_noprod")
    wait_flag(p,s(14),22,v(32),v(33),"fp",force=True)
    p.raw("; QUEUE_RESET")
    emit_ffn_reduce(p,sSeg,s(13))
    p.waitcnt(vm=0); p("s_barrier")
    p("s_xor_b32",s(12),s(12),1)
    p("s_add_u32",sSeg,sSeg,G); p("s_cmp_lt_u32",sSeg,64); p("s_cbranch_scc1","L_f_loop")
    p.label("L_f_exit"); p("s_endpgm")
    p.label("L_bail2"); p("s_endpgm")
    return p.finalize().replace("L_bail\n","L_bail3\n")+"L_bail3:\n  s_endpgm\n"
```

```python
MB=1<<20
WS_FLAGS = 0
WS_MOD   = 0x10000
WS_MEMG  = 0x20000
WS_INBOX = 0x40000
WS_H1    = 1*MB
WS_X1    = 4*MB
WS_KX    = 8*MB
WS_VT    = 24*MB
WS_QX    = 40*MB
WS_KM    = 56*MB
WS_VMT   = 60*MB
WS_SIZE  = 256*MB
KA_X, KA_MEM0, KA_WQ, KA_WK, KA_WV, KA_WO, KA_SEG, KA_BX, KA_W1, KA_W2, KA_C, KA_WMOD, KA_OUT, KA_DBG, KA_WS = [8*i for i in range(15)]
WS_H2    = 6*MB
WS_APART = 64*MB
WS_FPART = 96*MB
FL_MOD=0; FL_MODA=128; FL_CLR=256
FL_H1=1024
FL_K=FL_H1+64*128
FL_V=FL_K+32*128
FL_Q=FL_V+32*128
FL_C=FL_Q+32*128
FL_AP=FL_C+32*128
FL_AR=FL_AP+64*128
FL_FP=FL_AR+64*128
FL_END=FL_FP+64*128
assert FL_END<=0x10000
```

```python
from asm import *
from layout import *

SRD=s(4,4)
SRDD=s(52,4)
SRDA=s(48,4)
SRDB=s(44,4)
sId=s(8); sWv=s(9); sT=s(56,8); sSpin=s(43); sSeg=s(10)
SPIN_MAX=400000

def setup_common(p):
    p("v_and_b32",v(1),63,v(0)); p("v_lshrrev_b32",v(2),6,v(0))
    p("s_load_dwordx2",SRD[0:2],s(0,2),KA_WS); p("s_load_dwordx2",SRDD[0:2],s(0,2),KA_DBG)
    p("v_readfirstlane_b32",sWv,v(2)); p.waitcnt(lgkm=0)
    p("s_mov_b32",SRD[2],WS_SIZE); p("s_mov_b32",SRD[3],"0x20000"); p("s_mov_b32",SRDD[2],256); p("s_mov_b32",SRDD[3],"0x20000")
def load_srd(p,srd,ka,size):
    p("s_load_dwordx2",srd[0:2],s(0,2),ka); p.waitcnt(lgkm=0)
    p("s_mov_b32",srd[2],size); p("s_mov_b32",srd[3],"0x20000")

_uid=[0]
def wait_flag(p, off_sreg_or_imm, thresh, vt, va, tag, force=False):
    _uid[0]+=1; L=f"L_w{tag}{_uid[0]}"
    if not (SYNC or force): return
    p("v_mov_b32",va,off_sreg_or_imm)
    p("s_mov_b32",sSpin,0)
    p.label(L)
    p("buffer_load_dword",vt,va,SRD,0,mods="offen sc1"); p.waitcnt(vm=0)
    p("v_readfirstlane_b32",sT[7],vt)
    p("s_cmp_ge_u32",sT[7],thresh); p("s_cbranch_scc1",L+"d")
    p("s_sleep",2)
    p("s_add_u32",sSpin,sSpin,1); p("s_cmp_lt_u32",sSpin,SPIN_MAX); p("s_cbranch_scc1",L)
    p("s_branch","L_bail")
    p.label(L+"d")
SYNC=False

def emit_mod(p):
    lane=v(1); cg=v(3); kq=v(4); va=v(5); vc=v(6); t=v(7)
    load_srd(p,SRDA,KA_WMOD,512*3072*2); load_srd(p,SRDB,KA_C,1024)
    p("v_and_b32",cg,3,lane); p("v_lshrrev_b32",kq,2,lane)
    p("s_mul_i32",sT[0],sWv,128*6144); p("s_lshl_b32",sT[1],sId,6); p("s_add_u32",sT[0],sT[0],sT[1])
    p("s_mov_b32",sT[2],6144); p("v_mul_lo_u32",va,kq,sT[2]); p("v_lshlrev_b32",t,4,cg); p("v_add_u32",va,va,t); p("v_add_u32",va,sT[0],va)
    W=v(16,32); C=v(48,8); AC=v(56,8)
    for u in range(8):
        p("s_mov_b32",sT[3+(u&1)],u*16*6144)
        p("buffer_load_dwordx4",W[4*u:4*u+4],va,SRDA,sT[3+(u&1)],mods="offen")
    p("s_lshl_b32",sT[0],sWv,8); p("v_lshlrev_b32",vc,1,kq); p("v_add_u32",vc,sT[0],vc)
    for u in range(8): p("buffer_load_ushort",C[u],vc,SRDB,0,mods=f"offen offset:{32*u}")
    for u in range(8):
        p("v_lshlrev_b32",C[u],16,C[u])
        p("v_mul_f32",t,"0xbfb8aa3b",C[u]); p("v_exp_f32",t,t); p("v_add_f32",t,1.0,t); p("v_rcp_f32",t,t); p("v_mul_f32",C[u],C[u],t)
        p("v_cvt_pk_bf16_f32",C[u],C[u],C[u]); p("v_lshlrev_b32",C[u],16,C[u])
    for j in range(8): p("v_mov_b32",AC[j],0)
    lo=v(64); hi=v(65)
    for u in range(8):
        for d in range(4):
            p("v_lshlrev_b32",lo,16,W[4*u+d]); p("v_and_b32",hi,"0xffff0000",W[4*u+d])
            p("v_fmac_f32",AC[2*d],lo,C[u]); p("v_fmac_f32",AC[2*d+1],hi,C[u])
    for j in range(8):
        p("v_add_f32_dpp",AC[j],AC[j],AC[j],mods="row_ror:4 row_mask:0xf bank_mask:0xf")
        p("v_add_f32_dpp",AC[j],AC[j],AC[j],mods="row_ror:8 row_mask:0xf bank_mask:0xf")
        p("v_mov_b32",t,AC[j]); p("v_permlane16_swap_b32",AC[j],t); p("v_add_f32",AC[j],AC[j],t)
        p("v_mov_b32",t,AC[j]); p("v_permlane32_swap_b32",AC[j],t); p("v_add_f32",AC[j],AC[j],t)
    p("v_lshlrev_b32",t,5,cg); p("s_lshl_b32",sT[0],sWv,7); p("v_add_u32",t,sT[0],t)
    p("ds_write_b128",t,AC[0:4]); p("ds_write_b128",t,AC[4:8],mods="offset:16")
    p.waitcnt(lgkm=0); p("s_barrier")
    p("v_and_b32",t,31,lane); p("v_lshlrev_b32",t,2,t)
    for w_ in range(4): p("ds_read_b32",v(16+w_),t,mods=f"offset:{128*w_}")
    p("v_add_f32",v(16),v(16),v(17)); p("v_add_f32",v(18),v(18),v(19)); p("v_add_f32",v(16),v(16),v(18))
    p("v_cvt_pk_bf16_f32",v(16),v(16),v(16)); p("v_lshlrev_b32",v(16),16,v(16))
    p("s_lshl_b32",sT[0],sId,7); p("s_add_u32",sT[0],sT[0],WS_MOD)
    p("buffer_store_dword",v(16),t,SRD,sT[0],mods="offen sc1")

def emit_ln_tile(p, src_srd, src_soff, mod_sc_off, mod_sh_off, dst_soff, st="sc1", ld=""):
    lane=v(1); i_=v(3); g=v(4); va=v(5); vl=v(6); t=v(7); mu=v(8); rs=v(9); a0=v(10); a1=v(11); vm=v(12); tt=v(13)
    X=v(16,64); M=v(80,16)
    p("v_and_b32",i_,15,lane); p("v_lshrrev_b32",g,4,lane)
    p("v_lshlrev_b32",va,10,i_); p("v_lshlrev_b32",t,4,g); p("v_add_u32",va,va,t)
    for ks in range(16): p("buffer_load_dwordx4",X[4*ks:4*ks+4],va,src_srd,src_soff,mods=f"offen offset:{64*ks} {ld}")
    p("v_lshlrev_b32",vl,4,lane)
    p("v_lshlrev_b32",vm,5,g)
    p("v_mov_b32",a0,0); p("v_mov_b32",a1,0)
    lo=v(14); hi=v(15)
    for r in range(64):
        p("v_lshlrev_b32",lo,16,X[r]); p("v_and_b32",hi,"0xffff0000",X[r])
        p("v_add_f32",a0,a0,lo); p("v_add_f32",a1,a1,hi)
    p("v_add_f32",mu,a0,a1)
    for sw in ("v_permlane16_swap_b32","v_permlane32_swap_b32"):
        p("v_mov_b32",t,mu); p(sw,mu,t); p("v_add_f32",mu,mu,t)
    p("v_mul_f32",mu,"0x3b000000",mu)
    p("v_mov_b32",a0,0); p("v_mov_b32",a1,0)
    for r in range(64):
        p("v_lshlrev_b32",lo,16,X[r]); p("v_and_b32",hi,"0xffff0000",X[r])
        p("v_sub_f32",lo,lo,mu); p("v_sub_f32",hi,hi,mu)
        p("v_fmac_f32",a0,lo,lo); p("v_fmac_f32",a1,hi,hi)
    p("v_add_f32",rs,a0,a1)
    for sw in ("v_permlane16_swap_b32","v_permlane32_swap_b32"):
        p("v_mov_b32",t,rs); p(sw,rs,t); p("v_add_f32",rs,rs,t)
    p("v_mul_f32",rs,"0x3b000000",rs); p("v_add_f32",rs,"0x3727c5ac",rs); p("v_rsq_f32",rs,rs)
    for ks in range(16):
        SC=M[0:8]; SH=M[8:16]
        p("ds_read_b128",SC[0:4],vm,mods=f"offset:{mod_sc_off+128*ks}"); p("ds_read_b128",SC[4:8],vm,mods=f"offset:{mod_sc_off+128*ks+16}")
        p("ds_read_b128",SH[0:4],vm,mods=f"offset:{mod_sh_off+128*ks}"); p("ds_read_b128",SH[4:8],vm,mods=f"offset:{mod_sh_off+128*ks+16}")
        for d in range(4):
            x=X[4*ks+d]
            p("v_lshlrev_b32",lo,16,x); p("v_and_b32",hi,"0xffff0000",x)
            p("v_sub_f32",lo,lo,mu); p("v_sub_f32",hi,hi,mu)
            p("v_mul_f32",lo,lo,rs); p("v_mul_f32",hi,hi,rs)
            p("v_fma_f32",lo,lo,SC[2*d],SH[2*d]); p("v_fma_f32",hi,hi,SC[2*d+1],SH[2*d+1])
            p("v_cvt_pk_bf16_f32",x,lo,hi)
        p("s_add_u32",sT[5],dst_soff,1024*ks)
        p("buffer_store_dwordx4",X[4*ks:4*ks+4],vl,SRD,sT[5],mods=f"offen {st}")

def emit_modvec_to_lds(p, first_col, ncols, lds_off, add_one):
    t=v(7); d=v(14,2)
    p("v_lshlrev_b32",t,3,v(0))
    p("s_mov_b32",sT[5],WS_MOD+4*first_col)
    p("buffer_load_dwordx2",d,t,SRD,sT[5],mods="offen sc1")
    if add_one:
        p("v_add_f32",d[0],1.0,d[0]); p("v_add_f32",d[1],1.0,d[1])
        p("v_cvt_pk_bf16_f32",d[1],d[0],d[1]); p("v_lshlrev_b32",d[0],16,d[1]); p("v_and_b32",d[1],"0xffff0000",d[1])
    p("ds_write_b64",t,d,mods=f"offset:{lds_off}")

P_L_BUF=0
def emit_proj_weights(p, ka, col_sreg, abase):
    lane=v(1); n_=v(16); g=v(17); vo=v(18); t=v(19)
    load_srd(p,SRDA,ka,4*MB)
    p("v_and_b32",n_,15,lane); p("v_lshrrev_b32",g,4,lane)
    p("v_lshlrev_b32",vo,16,g)
    p("v_lshlrev_b32",t,2,n_); p("v_add_u32",vo,vo,t)
    p("s_lshl_b32",sT[0],col_sreg,8); p("s_lshl_b32",sT[1],sWv,6); p("s_add_u32",sT[0],sT[0],sT[1]); p("v_add_u32",vo,sT[0],vo)
    SELLO=s(70); SELHI=s(71)
    p("s_mov_b32",SELLO,"0x05040100"); p("s_mov_b32",SELHI,"0x07060302")
    NB=6; TMP=24
    def issue(gi):
        base=TMP+16*(gi%NB)
        for q in range(2):
            ks=2*gi+q
            for c in range(8):
                so=sT[2+(c&3)]
                p("s_mov_b32",so,(32*ks+c)*8192)
                p("buffer_load_dword",v(base+8*q+c),vo,SRDA,so,mods="offen")
    def process(gi):
        base=TMP+16*(gi%NB)
        for q in range(2):
            ks=2*gi+q
            for tl in range(2):
                for r in range(4):
                    tmp=v(120+((2*r+tl)&3))
                    p("v_perm_b32",tmp,v(base+8*q+2*r+1),v(base+8*q+2*r),SELLO if tl==0 else SELHI)
                    p("v_accvgpr_write_b32",a(abase+tl*64+ks*4+r),tmp)
    for gi in range(NB-1): issue(gi)
    for gi in range(8):
        if gi+NB-1<8: issue(gi+NB-1)
        process(gi)

def emit_proj_loop(p, tag, types, outs, nseg, seg0=0, flags=None):
    DM="v_mfma_f32_16x16x32_bf16"
    lane=v(1); vL16=v(6); vKV=v(7); t=v(8)
    p("v_lshlrev_b32",vL16,4,lane)
    p("v_and_b32",t,15,lane); p("v_lshlrev_b32",vKV,6,t); p("v_lshrrev_b32",t,4,lane); p("v_lshlrev_b32",t,4,t); p("v_add_u32",vKV,vKV,t)
    p("s_lshl_b32",sT[0],sWv,11); p("v_add_u32",vKV,sT[0],vKV)
    sSrc=s(24); sBuf=s(25); sO=[s(26),s(27)]; sNext=s(28)
    FR=v(16,32)
    AC=v(64,32)
    PK=v(96,16)
    def dma(seg_sreg, buf_sreg):
        p("s_lshl_b32",sT[1],seg_sreg,15); p("s_lshl_b32",sT[2],sWv,13); p("s_add_u32",sT[1],sT[1],sT[2]); p("s_add_u32",sT[1],sT[1],WS_H1)
        p("s_add_u32",sT[3],buf_sreg,sT[2])
        for u in range(8):
            p("s_add_u32",M0,sT[3],1024*u)
            p("s_add_u32",sT[4],sT[1],1024*u)
            p("buffer_load_dwordx4",vL16,SRD,sT[4],mods="offen sc1 lds")
    p("s_mov_b32",sSeg,seg0); p("s_mov_b32",sBuf,0)
    if flags: flags('h1',sSeg)
    dma(sSeg,sBuf)
    p.waitcnt(vm=0)
    p.label(f"L_{tag}_loop")
    p.raw("; QUEUE_RESET")
    p.waitcnt(vm=4)
    p("s_barrier")
    p("s_add_u32",sNext,sSeg,1); p("s_xor_b32",sT[0],sBuf,32768)
    p("s_cmp_ge_u32",sNext,seg0+nseg); p("s_cbranch_scc1",f"L_{tag}_nodma")
    if flags: flags('h1',sNext)
    p("s_xor_b32",s(29),sBuf,32768)
    dma(sNext,s(29))
    p.label(f"L_{tag}_nodma")
    if flags: flags('pub',sSeg)
    p("v_add_u32",t,sBuf,vL16)
    p.begin()
    for tt in range(2):
        for ks in range(16):
            fr=FR[4*((tt*16+ks)%8):4*((tt*16+ks)%8)+4]
            p("ds_read_b128",fr,t,mods=f"offset:{tt*16384+ks*1024}")
            for sl in range(2):
                for tl in range(2):
                    d=AC[16*sl+8*tt+4*tl:16*sl+8*tt+4*tl+4]; w=a(128*sl+64*tl+4*ks,4)
                    c=0 if ks==0 else d
                    if types[sl]=='KQ': p(DM,d,w,fr,c)
                    else: p(DM,d,fr,w,c)
    for sl in range(2):
        A=lambda tt,tl: AC[16*sl+8*tt+4*tl:16*sl+8*tt+4*tl+4]
        if types[sl]=='KQ':
            for tt in range(2):
                q=PK[8*sl+4*tt:8*sl+4*tt+4]
                for j in range(4): p("v_cvt_pk_bf16_f32",q[j],A(tt,0)[j],A(tt,1)[j])
        else:
            for tl in range(2):
                q=PK[8*sl+4*tl:8*sl+4*tl+4]
                p("v_cvt_pk_bf16_f32",q[0],A(0,tl)[0],A(0,tl)[1]); p("v_cvt_pk_bf16_f32",q[1],A(0,tl)[2],A(0,tl)[3])
                p("v_cvt_pk_bf16_f32",q[2],A(1,tl)[0],A(1,tl)[1]); p("v_cvt_pk_bf16_f32",q[3],A(1,tl)[2],A(1,tl)[3])
    p.end(name=f"proj_{tag}")
    p("s_lshl_b32",sT[0],sSeg,13)
    for sl in range(2):
        p("s_add_u32",sO[sl],outs[sl],sT[0])
        for q in range(2): p("buffer_store_dwordx4",PK[8*sl+4*q:8*sl+4*q+4],vKV,SRD,sO[sl],mods=f"offen offset:{1024*q} sc1")
    p("s_xor_b32",sBuf,sBuf,32768)
    p("s_add_u32",sSeg,sSeg,1)
    p("s_cmp_lt_u32",sSeg,seg0+nseg); p("s_cbranch_scc1",f"L_{tag}_loop")
    p.waitcnt(vm=0); p("s_barrier")
    if flags: flags('pubfinal',sSeg)

DM="v_mfma_f32_16x16x32_bf16"; TM="v_mfma_f32_16x16x16_bf16"
def load_colmajor_weights(p, ka, size, nks, row_of, lane_row_stride, base_sreg, abase, rowbytes, extra_voff=None):
    lane=v(1); n_=v(16); g=v(17); vo=v(18); t=v(19)
    load_srd(p,SRDA,ka,size)
    p("v_and_b32",n_,15,lane); p("v_lshrrev_b32",g,4,lane)
    p("s_mov_b32",sT[0],8*rowbytes); p("v_mul_lo_u32",vo,g,sT[0]); p("v_lshlrev_b32",t,4,n_); p("v_add_u32",vo,vo,t); p("v_add_u32",vo,base_sreg,vo)
    SELLO=s(70); SELHI=s(71)
    p("s_mov_b32",SELLO,"0x05040100"); p("s_mov_b32",SELHI,"0x07060302")
    NB=3; TMP=24
    def issue(ks):
        base=TMP+32*(ks%NB)
        for c in range(8):
            so=sT[2+(c&3)]
            p("s_mov_b32",so,row_of(ks,c)*rowbytes)
            p("buffer_load_dwordx4",v(base+4*c,4),vo,SRDA,so,mods="offen")
    def process(ks):
        base=TMP+32*(ks%NB)
        for tl in range(8):
            for r in range(4):
                tmp=v(120+(r&3))
                p("v_perm_b32",tmp,v(base+4*(2*r+1)+(tl>>1)),v(base+4*(2*r)+(tl>>1)),SELLO if (tl&1)==0 else SELHI)
                p("v_accvgpr_write_b32",a(abase+(tl*nks+ks)*4+r),tmp)
    for ks in range(min(NB-1,nks)): issue(ks)
    for ks in range(nks):
        if ks+NB-1<nks: issue(ks+NB-1)
        process(ks)

def selr_regs(p, R4, n_, t, t2):
    p("v_and_b32",t,7,n_)
    for r in range(4):
        p("v_mov_b32",t2,"0x3f80"); p("v_cmp_eq_u32",VCC,2*r,t); p("v_cndmask_b32",R4[r],0,t2,VCC)
        p("v_mov_b32",t2,"0x3f800000"); p("v_cmp_eq_u32",VCC,2*r+1,t); p("v_cndmask_b32",R4[r],R4[r],t2,VCC)

def emit_partial_store(p, AC, vP, sbase, tmpS, PK):
    k=0
    for mt in range(2):
        for j in range(4):
            q=PK[4*(k%len_div(PK)):4*(k%len_div(PK))+4]
            for d in range(4): p("v_cvt_pk_bf16_f32",q[d],AC[mt][2*d][j],AC[mt][2*d+1][j])
            p("s_add_u32",tmpS,sbase,(16*mt+j)*32768)
            p("buffer_store_dwordx4",q,vP,SRD,tmpS,mods="offen sc1")
            k+=1
def len_div(PK): return PK.c//4

def emit_row_reduce(p, nload, vR, sbase, SelR, DATA, D, tmpS):
    for u in range(nload):
        p("s_add_u32",tmpS,sbase,u*4096)
        p("buffer_load_dwordx4",DATA[4*u:4*u+4],vR,SRD,tmpS,mods="offen sc1")
    for u in range(nload): p(DM,D,SelR,DATA[4*u:4*u+4],0 if u==0 else D)

def wave_allreduce_add(p, x, t):
    for r in (1,2,4,8): p("v_add_f32_dpp",x,x,x,mods=f"row_ror:{r} row_mask:0xf bank_mask:0xf")
    for sw in ("v_permlane16_swap_b32","v_permlane32_swap_b32"):
        p("v_mov_b32",t,x); p(sw,x,t); p("v_add_f32",x,x,t)

A_L_O=0
A_L_ST=8192
def emit_attn_setup(p):
    lane=v(1); n_=v(100); g=v(101); t=v(102); t2=v(103)
    p("s_lshl_b32",sT[6],sId,17); p("s_lshl_b32",sT[7],sWv,8); p("s_add_u32",s(20),sT[6],sT[7])
    load_colmajor_weights(p,KA_WO,4*MB,4,lambda ks,c:32*ks+c,None,s(20),0,1024)
    p("v_and_b32",n_,15,lane); p("v_lshrrev_b32",g,4,lane)
    A=AReg
    p("v_lshlrev_b32",A.vL16,4,lane)
    p("v_lshlrev_b32",A.vKV,6,n_); p("v_lshlrev_b32",t,4,g); p("v_add_u32",A.vKV,A.vKV,t)
    p("v_lshrrev_b32",t,2,n_); p("v_lshlrev_b32",t,1,t); p("v_and_b32",t2,1,n_); p("v_add_u32",t,t,t2); p("v_lshlrev_b32",t,6,t)
    p("v_lshlrev_b32",t2,4,g); p("v_add_u32",A.vKM,t,t2)
    p("v_lshlrev_b32",t,9,g); p("v_lshlrev_b32",t2,3,n_); p("v_add_u32",t,t,t2)
    p("s_lshr_b32",sT[0],sWv,1); p("s_lshl_b32",sT[0],sT[0],8); p("v_add_u32",A.vVM,sT[0],t)
    p("v_lshlrev_b32",t,17,g); p("v_lshlrev_b32",t2,4,n_); p("v_add_u32",t,t,t2)
    p("s_lshl_b32",sT[0],sWv,8); p("s_lshl_b32",sT[1],sId,10); p("s_add_u32",sT[0],sT[0],sT[1]); p("v_add_u32",A.vP,sT[0],t)
    p("v_lshlrev_b32",t,10,g); p("v_lshlrev_b32",t2,4,n_); p("v_add_u32",t,t,t2); p("s_lshl_b32",sT[0],sWv,8); p("v_add_u32",A.vR,sT[0],t)
    p("v_and_b32",t,1,g); p("v_lshlrev_b32",t,3,t); p("v_add_u32",t,t,t2); p("s_lshl_b32",sT[0],sWv,8); p("v_add_u32",A.vX,sT[0],t)
    selr_regs(p,A.SelR,n_,t,t2)
    for i in range(4): p("v_mov_b32",A.ONES[i],"0x3f803f80")
    p("s_and_b32",sT[0],sWv,1); p("s_lshl_b32",sT[0],sT[0],4)
    p("v_lshlrev_b32",t,2,g); p("v_sub_u32",t,n_,t); p("v_add_u32",t,sT[0],t)
    for kt in range(2):
        if kt==1: p("v_subrev_u32",t,16,t)
        for j in range(4): p("v_cmp_le_i32",A.sM[2*(4*kt+j):2*(4*kt+j)+2],j,t)
    p("v_lshlrev_b32",t,1,A.vX)
    for reg,idx in ((A.GA,2),(A.CB,4),(A.SB,3)):
        p("s_mov_b32",sT[0],WS_MOD+idx*2048)
        p("buffer_load_dwordx4",reg,t,SRD,sT[0],mods="offen sc1")
    for j in range(4):
        p("v_add_f32",A.CB[j],1.0,A.CB[j]); p("v_cvt_pk_bf16_f32",A.CB[j],A.CB[j],A.CB[j]); p("v_lshlrev_b32",A.CB[j],16,A.CB[j])
    p("s_mov_b32",s(38),"0x3e0293ee")
class AReg:
    vL16=v(2); vKV=v(3); vKM=v(4); vVM=v(5); vP=v(6); vR=v(7); vX=v(8)
    SelR=v(10,4); ONES=v(14,4); GA=v(18,4); CB=v(22,4); SB=v(26,4)
    sM=s(72,16)
def emit_attn_task(p, sSegR, sPartBase, flags=None):
    A=AReg; sC=s(38)
    Qf=v(32,16); Kf=v(48,32); KMf=v(80,16); Vf=v(96,16); VMf=v(112,4); T=v(116,12)
    sQ=s(24); sK=s(25); sV=s(26); sKM=s(27); sVM=s(28)
    p("s_lshl_b32",sT[0],sId,19); p("s_lshl_b32",sT[1],sSegR,13); p("s_add_u32",sT[0],sT[0],sT[1])
    p("s_and_b32",sT[2],sWv,1); p("s_lshl_b32",sT[2],sT[2],10)
    p("s_add_u32",sQ,sT[0],WS_QX); p("s_add_u32",sQ,sQ,sT[2])
    p("s_add_u32",sK,sT[0],WS_KX)
    p("s_lshr_b32",sT[2],sWv,1); p("s_lshl_b32",sT[2],sT[2],12); p("s_add_u32",sV,sT[0],WS_VT); p("s_add_u32",sV,sV,sT[2])
    p("s_lshl_b32",sT[0],sSegR,16); p("s_lshl_b32",sT[1],sId,11); p("s_add_u32",sT[0],sT[0],sT[1])
    p("s_add_u32",sKM,sT[0],WS_KM); p("s_add_u32",sVM,sT[0],WS_VMT)
    if flags: flags('qkv',sSegR)
    for ks in range(4):
        p("s_add_u32",sT[3],sQ,2048*ks); p("buffer_load_dwordx4",Qf[4*ks:4*ks+4],A.vKV,SRD,sT[3],mods="offen sc1")
        p("s_add_u32",sT[4],sK,2048*ks)
        for kt in range(2): p("buffer_load_dwordx4",Kf[16*kt+4*ks:16*kt+4*ks+4],A.vKV,SRD,sT[4],mods=f"offen offset:{1024*kt} sc1")
    for q in range(4):
        p("buffer_load_dwordx4",Vf[4*q:4*q+4],A.vKV,SRD,sV,mods=f"offen offset:{(q>>1)*2048+(q&1)*1024} sc1")
    if flags: flags('chain',sSegR)
    for ks in range(4): p("buffer_load_dwordx4",KMf[4*ks:4*ks+4],A.vKM,SRD,sKM,mods=f"offen offset:{512*ks} sc1")
    for q in range(2): p("buffer_load_dwordx2",VMf[2*q:2*q+2],A.vVM,SRD,sVM,mods=f"offen offset:{128*q} sc1")
    p.begin()
    SX=[T[0:4],T[4:8]]; SM=T[8:12]
    for kt in range(2):
        for ks in range(4): p(DM,SX[kt],Kf[16*kt+4*ks:16*kt+4*ks+4],Qf[4*ks:4*ks+4],0 if ks==0 else SX[kt])
    for ks in range(4): p(DM,SM,KMf[4*ks:4*ks+4],Qf[4*ks:4*ks+4],0 if ks==0 else SM)
    NEG=Qf[0]; mx=Qf[1]; t1=Qf[2]
    p("v_mov_b32",NEG,"0xff7fffff")
    for kt in range(2):
        for j in range(4): p("v_cndmask_b32",SX[kt][j],NEG,SX[kt][j],A.sM[2*(4*kt+j):2*(4*kt+j)+2])
    p("v_max3_f32",mx,SX[0][0],SX[0][1],SX[0][2]); p("v_max3_f32",mx,mx,SX[0][3],SX[1][0]); p("v_max3_f32",mx,mx,SX[1][1],SX[1][2])
    p("v_max3_f32",mx,mx,SX[1][3],SM[0]); p("v_max_f32",mx,mx,SM[1])
    for sw in ("v_permlane16_swap_b32","v_permlane32_swap_b32"):
        p("v_mov_b32",t1,mx); p(sw,mx,t1); p("v_max_f32",mx,mx,t1)
    p("v_mul_f32",mx,sC,mx)
    E=[SX[0][j] for j in range(4)]+[SX[1][j] for j in range(4)]+[SM[0],SM[1]]
    for x in E: p("v_fma_f32",x,x,sC,Neg(mx))
    for x in E: p("v_exp_f32",x,x)
    PX=Qf[4:8]; PM=Qf[8:12]
    p("v_cvt_pk_bf16_f32",PX[0],SX[0][0],SX[0][1]); p("v_cvt_pk_bf16_f32",PX[1],SX[0][2],SX[0][3])
    p("v_cvt_pk_bf16_f32",PX[2],SX[1][0],SX[1][1]); p("v_cvt_pk_bf16_f32",PX[3],SX[1][2],SX[1][3])
    p("v_cvt_pk_bf16_f32",PM[0],SM[0],SM[1]); p("v_mov_b32",PM[1],0); p("v_mov_b32",PM[2],0); p("v_mov_b32",PM[3],PM[0])
    LS=T[0:4]
    p(DM,LS,A.ONES,PX,0); p(TM,LS,A.ONES[0:2],PM[0:2],LS)
    O=[Kf[4*q:4*q+4] for q in range(4)]
    for q in range(4):
        p(DM,O[q],Vf[4*q:4*q+4],PX,0)
        p(TM,O[q],VMf[2*(q>>1):2*(q>>1)+2],PM[2*(q&1):2*(q&1)+2],O[q])
    rc=T[4]
    p("v_rcp_f32",rc,LS[0])
    OF=[Kf[16:20],Kf[20:24]]
    for wq in range(2):
        for j in range(4):
            p("v_mul_f32",O[2*wq][j],O[2*wq][j],rc); p("v_mul_f32",O[2*wq+1][j],O[2*wq+1][j],rc)
            p("v_cvt_pk_bf16_f32",OF[wq][j],O[2*wq][j],O[2*wq+1][j])
    p.end(name="attn1")
    va=T[5]
    p("s_and_b32",sT[0],sWv,1); p("s_lshl_b32",sT[0],sT[0],12); p("s_lshr_b32",sT[1],sWv,1); p("s_lshl_b32",sT[1],sT[1],11); p("s_add_u32",sT[0],sT[0],sT[1])
    p("v_add_u32",va,sT[0],A.vL16)
    for wq in range(2): p("ds_write_b128",va,OF[wq],mods=f"offset:{A_L_O+1024*wq}")
    p.waitcnt(lgkm=0); p("s_barrier")
    p.begin()
    OFR=v(32,32)
    AC=[[v(64+32*mt+4*t_,4) for t_ in range(8)] for mt in range(2)]
    for mt in range(2):
        for ks in range(4): p("ds_read_b128",OFR[16*mt+4*ks:16*mt+4*ks+4],A.vL16,mods=f"offset:{A_L_O+(mt*4+ks)*1024}")
    for mt in range(2):
        for t_ in range(8):
            for ks in range(4): p(DM,AC[mt][t_],OFR[16*mt+4*ks:16*mt+4*ks+4],a((t_*4+ks)*4,4),0 if ks==0 else AC[mt][t_])
    p.end(name="attn2")
    emit_partial_store(p,AC,A.vP,sPartBase,sT[3],v(32,16))
    p.waitcnt(vm=0); p("s_barrier")

def emit_signal(p, off, vt, va, inc=1):
    _uid[0]+=1; L=f"L_sig{_uid[0]}"
    p("s_cmp_lg_u32",sWv,0); p("s_cbranch_scc1",L)
    p("v_mov_b32",vt,inc); p("v_mov_b32",va,off)
    p("s_mov_b64",EXEC,1); p("buffer_atomic_add",vt,va,SRD,0,mods="offen sc1"); p("s_mov_b64",EXEC,-1)
    p.label(L)

def emit_attn_reduce(p, sSegR, sPartBase):
    A=AReg
    DATA=v(32,32); D=v(64,4); X=v(68,2); Y=v(72,4); t=v(76); s1=v(77); s2=v(78); t2=v(79); H=v(80,4)
    p("s_lshl_b32",sT[0],sId,15); p("s_add_u32",sT[0],sT[0],sPartBase)
    p("s_lshl_b32",sT[1],sSegR,15); p("s_lshl_b32",sT[2],sId,10); p("s_add_u32",s(24),sT[1],sT[2])
    p("buffer_load_dwordx2",X,A.vX,SRDB,s(24),mods="offen")
    emit_row_reduce(p,8,A.vR,sT[0],A.SelR,DATA,D,sT[3])
    p("v_lshlrev_b32",Y[0],16,X[0]); p("v_and_b32",Y[1],"0xffff0000",X[0]); p("v_lshlrev_b32",Y[2],16,X[1]); p("v_and_b32",Y[3],"0xffff0000",X[1])
    for j in range(4): p("v_fma_f32",Y[j],D[j],A.GA[j],Y[j])
    p("v_cvt_pk_bf16_f32",X[0],Y[0],Y[1]); p("v_cvt_pk_bf16_f32",X[1],Y[2],Y[3])
    p("s_add_u32",s(25),s(24),WS_X1)
    p("buffer_store_dwordx2",X,A.vX,SRD,s(25),mods="offen sc1")
    p("v_lshlrev_b32",Y[0],16,X[0]); p("v_and_b32",Y[1],"0xffff0000",X[0]); p("v_lshlrev_b32",Y[2],16,X[1]); p("v_and_b32",Y[3],"0xffff0000",X[1])
    p("v_add_f32",s1,Y[0],Y[1]); p("v_add_f32",t,Y[2],Y[3]); p("v_add_f32",s1,s1,t)
    p("v_mul_f32",s2,Y[0],Y[0]);
    for j in (1,2,3): p("v_fmac_f32",s2,Y[j],Y[j])
    wave_allreduce_add(p,s1,t); wave_allreduce_add(p,s2,t)
    p("s_lshl_b32",sT[0],sWv,3); p("s_add_u32",sT[0],sT[0],A_L_ST); p("v_mov_b32",t,sT[0])
    SP=v(82,2); p("v_mov_b32",SP[0],s1); p("v_mov_b32",SP[1],s2)
    p("ds_write_b64",t,SP); p.waitcnt(lgkm=0); p("s_barrier")
    ST=v(84,8); p("v_mov_b32",t,A_L_ST)
    p("ds_read_b128",ST[0:4],t); p("ds_read_b128",ST[4:8],t,mods="offset:16")
    p("v_add_f32",s1,ST[0],ST[2]); p("v_add_f32",t,ST[4],ST[6]); p("v_add_f32",s1,s1,t)
    p("v_add_f32",s2,ST[1],ST[3]); p("v_add_f32",t,ST[5],ST[7]); p("v_add_f32",s2,s2,t)
    p("v_mul_f32",s1,"0x3a800000",s1); p("v_mul_f32",s2,"0x3a800000",s2)
    p("v_fma_f32",s2,Neg(s1),s1,s2); p("v_max_f32",s2,0,s2); p("v_add_f32",s2,"0x3727c5ac",s2); p("v_rsq_f32",s2,s2)
    for j in range(4):
        p("v_sub_f32",Y[j],Y[j],s1); p("v_mul_f32",Y[j],Y[j],s2); p("v_fma_f32",Y[j],Y[j],A.CB[j],A.SB[j])
    p("v_cvt_pk_bf16_f32",H[0],Y[0],Y[1]); p("v_cvt_pk_bf16_f32",H[1],Y[2],Y[3])
    p("s_add_u32",s(25),s(24),WS_H2)
    p("buffer_store_dwordx2",H[0:2],A.vX,SRD,s(25),mods="offen sc1")
    p.waitcnt(vm=0); p("s_barrier")

F_L_H=0
F_L_A=32768
class FReg:
    vL16=v(2); vH=v(3); vP=v(6); vR=v(7); vX=v(8); vAW=v(4); SelR=v(10,4); GB=v(18,4)
def emit_ffn_setup(p):
    F=FReg; lane=v(1); n_=v(16); g=v(17); vo=v(18); t=v(19); t2=v(20)
    load_srd(p,SRDA,KA_W1,512*1376*2)
    p("v_and_b32",n_,15,lane); p("v_lshrrev_b32",g,4,lane)
    p("s_mov_b32",sT[0],8*2752); p("v_mul_lo_u32",vo,g,sT[0]); p("v_lshlrev_b32",t,2,n_); p("v_add_u32",vo,vo,t)
    p("s_lshl_b32",sT[0],sId,7); p("s_lshr_b32",sT[1],sWv,1); p("s_lshl_b32",sT[1],sT[1],6); p("s_add_u32",sT[0],sT[0],sT[1])
    p("s_cmp_ge_u32",sT[0],2752); p("s_cselect_b32",sT[0],"0x40000000",sT[0])
    p("v_add_u32",vo,sT[0],vo)
    SEL=s(70); p("s_and_b32",sT[1],sWv,1); p("s_cmp_eq_u32",sT[1],0); p("s_mov_b32",s(71),"0x07060302"); p("s_cselect_b32",SEL,"0x05040100",s(71))
    NB=6; TMP=24
    def issue(gi):
        base=TMP+16*(gi%NB)
        for q in range(2):
            ks=2*gi+q
            for c in range(8):
                so=sT[2+(c&3)]; p("s_mov_b32",so,(32*ks+c)*2752)
                p("buffer_load_dword",v(base+8*q+c),vo,SRDA,so,mods="offen")
    def process(gi):
        base=TMP+16*(gi%NB)
        for q in range(2):
            ks=2*gi+q
            for r in range(4):
                tmp=v(120+r); p("v_perm_b32",tmp,v(base+8*q+2*r+1),v(base+8*q+2*r),SEL); p("v_accvgpr_write_b32",a(ks*4+r),tmp)
    for gi in range(NB-1): issue(gi)
    for gi in range(8):
        if gi+NB-1<8: issue(gi+NB-1)
        process(gi)
    p("s_lshl_b32",sT[6],sId,16); p("s_lshl_b32",sT[7],sWv,8); p("s_add_u32",s(20),sT[6],sT[7])
    load_colmajor_weights(p,KA_W2,1376*1024,2,lambda ks,c:32*ks+2*(c&3)+(c>>2),None,s(20),64,1024)
    n_=v(100); g=v(101); t=v(102); t2=v(103)
    p("v_and_b32",n_,15,lane); p("v_lshrrev_b32",g,4,lane)
    p("v_lshlrev_b32",F.vL16,4,lane)
    p("v_lshlrev_b32",F.vH,10,n_); p("v_lshlrev_b32",t,4,g); p("v_add_u32",F.vH,F.vH,t)
    p("v_lshlrev_b32",t,17,g); p("v_lshlrev_b32",t2,4,n_); p("v_add_u32",t,t,t2)
    p("s_lshl_b32",sT[0],sWv,8); p("s_lshl_b32",sT[1],sId,10); p("s_add_u32",sT[0],sT[0],sT[1]); p("v_add_u32",F.vP,sT[0],t)
    p("v_lshlrev_b32",t,10,g); p("v_add_u32",t,t,t2); p("s_lshl_b32",sT[0],sWv,8); p("v_add_u32",F.vR,sT[0],t)
    p("v_and_b32",t,1,g); p("v_lshlrev_b32",t,3,t); p("v_add_u32",t,t,t2); p("s_lshl_b32",sT[0],sWv,8); p("v_add_u32",F.vX,sT[0],t)
    p("s_lshr_b32",sT[0],sWv,1); p("s_lshl_b32",sT[0],sT[0],10); p("s_and_b32",sT[1],sWv,1); p("s_lshl_b32",sT[1],sT[1],3); p("s_add_u32",sT[0],sT[0],sT[1])
    p("s_add_u32",sT[0],sT[0],F_L_A); p("v_add_u32",F.vAW,sT[0],F.vL16)
    selr_regs(p,F.SelR,n_,t,t2)
    p("v_lshlrev_b32",t,1,F.vX); p("s_mov_b32",sT[0],WS_MOD+5*2048)
    p("buffer_load_dwordx4",F.GB,t,SRD,sT[0],mods="offen sc1")
def emit_ffn_task(p, sSegR, sPartBase):
    F=FReg
    p("s_lshl_b32",sT[1],sSegR,15); p("s_add_u32",sT[1],sT[1],WS_H2)
    p("s_lshr_b32",sT[2],sWv,1); p("s_lshl_b32",sT[2],sT[2],14); p("s_add_u32",sT[1],sT[1],sT[2])
    p("s_and_b32",sT[3],sWv,1); p("s_lshl_b32",sT[4],sT[3],9); p("s_add_u32",sT[1],sT[1],sT[4])
    p("s_lshl_b32",sT[3],sT[3],13); p("s_add_u32",sT[3],sT[3],sT[2])
    for u in range(8):
        p("s_add_u32",M0,sT[3],F_L_H+1024*u)
        p("s_add_u32",sT[4],sT[1],64*u)
        p("buffer_load_dwordx4",F.vH,SRD,sT[4],mods="offen sc1 lds")
    p.waitcnt(vm=0); p("s_barrier")
    p.begin()
    FR=v(32,32); D1=[v(64,4),v(68,4)]
    for tt in range(2):
        for ks in range(16):
            fr=FR[4*((tt*16+ks)%8):4*((tt*16+ks)%8)+4]
            p("ds_read_b128",fr,F.vL16,mods=f"offset:{F_L_H+tt*16384+ks*1024}")
            p(DM,D1[tt],a(4*ks,4),fr,0 if ks==0 else D1[tt])
    AP=v(72,4)
    for tt in range(2):
        for j in range(4): p("v_max_f32",D1[tt][j],0,D1[tt][j])
        p("v_cvt_pk_bf16_f32",AP[2*tt],D1[tt][0],D1[tt][1]); p("v_cvt_pk_bf16_f32",AP[2*tt+1],D1[tt][2],D1[tt][3])
    p.end(name="ffn1")
    for tt in range(2): p("ds_write_b64",F.vAW,AP[2*tt:2*tt+2],mods=f"offset:{2048*tt}")
    p.waitcnt(lgkm=0); p("s_barrier")
    p.begin()
    AF=v(32,16); AC=[[v(64+32*mt+4*t_,4) for t_ in range(8)] for mt in range(2)]
    for mt in range(2):
        for ks in range(2): p("ds_read_b128",AF[8*mt+4*ks:8*mt+4*ks+4],F.vL16,mods=f"offset:{F_L_A+mt*2048+ks*1024}")
    for mt in range(2):
        for t_ in range(8):
            for ks in range(2): p(DM,AC[mt][t_],AF[8*mt+4*ks:8*mt+4*ks+4],a(64+(t_*2+ks)*4,4),0 if ks==0 else AC[mt][t_])
    p.end(name="ffn2")
    emit_partial_store(p,AC,F.vP,sPartBase,sT[3],v(32,16))
    p.waitcnt(vm=0); p("s_barrier")
def emit_ffn_reduce(p, sSegR, sPartBase):
    F=FReg
    DATA=v(32,24); D=v(64,4); X=v(68,2); Y=v(72,4); vr=v(76); t=v(77)
    p("s_lshl_b32",sT[0],sId,15); p("s_add_u32",sT[0],sT[0],sPartBase)
    p("s_lshl_b32",sT[1],sSegR,15); p("s_lshl_b32",sT[2],sId,10); p("s_add_u32",s(24),sT[1],sT[2])
    p("s_add_u32",s(25),s(24),WS_X1)
    p("buffer_load_dwordx2",X,F.vX,SRD,s(25),mods="offen sc1")
    p("v_cmp_le_u32",VCC,32,v(1)); p("v_mov_b32",t,"0x7ff00000"); p("v_cndmask_b32",vr,F.vR,t,VCC)
    for u in range(6):
        p("s_add_u32",sT[3],sT[0],u*4096)
        p("buffer_load_dwordx4",DATA[4*u:4*u+4],F.vR if u<5 else vr,SRD,sT[3],mods="offen sc1")
    for u in range(6): p(DM,D,F.SelR,DATA[4*u:4*u+4],0 if u==0 else D)
    p("v_lshlrev_b32",Y[0],16,X[0]); p("v_and_b32",Y[1],"0xffff0000",X[0]); p("v_lshlrev_b32",Y[2],16,X[1]); p("v_and_b32",Y[3],"0xffff0000",X[1])
    for j in range(4): p("v_fma_f32",Y[j],D[j],F.GB[j],Y[j])
    p("v_cvt_pk_bf16_f32",X[0],Y[0],Y[1]); p("v_cvt_pk_bf16_f32",X[1],Y[2],Y[3])
    p("buffer_store_dwordx2",X,F.vX,SRDB,s(24),mods="offen")
```

```python
import sys; sys.path.insert(0,'gen')
from asm import *; from layout import *
import chain, roles, kernels1 as K
NAME="adaLN_cond__memory_aug_recurrent_mem_tr__dense_activation_relu__prompt"
HEADER=open(f"cdna_kernels/{NAME}.s.ref").read().split("; Override launch geometry")[0]
def kd(name,vgpr,accum,sgpr=102):
    return f""".section .rodata,"a"
.p2align 6
.amdhsa_kernel {name}
  .amdhsa_next_free_vgpr {vgpr}
  .amdhsa_next_free_sgpr {sgpr}
  .amdhsa_accum_offset {accum}
  .amdhsa_group_segment_fixed_size 0
  .amdhsa_kernarg_size 120
  .amdhsa_user_sgpr_count 2
  .amdhsa_user_sgpr_kernarg_segment_ptr 1
  .amdhsa_system_sgpr_workgroup_id_x 1
.end_amdhsa_kernel
.text
"""
def assemble(kernels):
    s_=HEADER
    for (n,b,vg,ac,g,lds) in kernels: s_+=f"; @launch kernel={n} grid=({g},1,1) block=(256,1,1) lds={lds}\n"
    s_+='.amdgcn_target "amdgcn-amd-amdhsa--gfx950"\n.text\n'
    seen=set()
    for (n,b,vg,ac,g,lds) in kernels:
        if n in seen: continue
        seen.add(n)
        s_+=f".globl {n}\n.p2align 8\n.type {n},@function\n{n}:\n{b}"
        s_+="  s_endpgm\n"
        s_+=kd(n,vg,ac)
    return s_
def k_mod_clear():
    from roles import setup_common, emit_mod, sId, sWv, SRD, sT
    p=Prog()
    p("s_cmp_ge_u32",s(2),160); p("s_cbranch_scc1","L_mod_exit")
    setup_common(p)
    p("s_cmp_ge_u32",s(2),96); p("s_cbranch_scc1","L_mod_clear")
    p("s_mov_b32",sId,s(2))
    emit_mod(p); p.waitcnt(vm=0)
    p("s_endpgm")
    p.label("L_mod_clear")
    p("s_sub_u32",sT[0],s(2),96); p("s_lshl_b32",sT[0],sT[0],10)
    p("v_mov_b32",v(4),0); p("v_lshlrev_b32",v(3),2,v(0))
    p("buffer_store_dword",v(4),v(3),SRD,sT[0],mods="offen sc1"); p.waitcnt(vm=0)
    p.label("L_mod_exit"); p("s_endpgm")
    return p.finalize()
def k_chain():
    chain.D1=4; chain.D2=4; chain.TIMING=False
    p=Prog()
    p("s_cmp_ge_u32",s(2),256); p("s_cbranch_scc1","L_exit")
    chain.emit_ticket(p,"L_exit")
    chain.emit_chain_role(p)
    p.label("L_exit"); p("s_endpgm")
    return p.finalize()
def relabel(body,pre):
    import re
    return re.sub(r"\bL_([A-Za-z0-9_]+)",lambda m:f"L{pre}_{m.group(1)}",body)
if __name__=="__main__":
    import io,contextlib
    with contextlib.redirect_stdout(io.StringIO()):
        ks=[("mod_kernel",relabel(k_mod_clear(),"m"),128,128,160,4096),
            ("ln1_kernel",relabel(K.k_ln1(),"l"),128,128,32,8192),
            ("proj_kernel",relabel(K.k_proj(),"p"),512,256,48,65536),
            (NAME+"_kernel",relabel(k_chain(),"c"),512,256,256,chain.L_TOTAL),
            ("attn_kernel",relabel(K.k_attn(6),"a"),256,128,192,65536),
            ("ffn_kernel",relabel(K.k_ffn(6),"f"),256,128,192,65536)]
    out=assemble(ks)
    dst=sys.argv[1] if len(sys.argv)>1 else f"cdna_kernels/{NAME}.s"
    open(dst,"w").write(out)
    print("wrote",dst,len(out),"bytes")
```
